```python
import torch

def _softmax(x, axis=-1):
    return torch.softmax(x, dim=axis)
def _gelu(x):
    return torch.nn.functional.gelu(x, approximate="tanh")
def _silu(x):
    return torch.nn.functional.silu(x)
def _sigmoid(x):
    return torch.sigmoid(x)
def _layernorm(x, axis=-1, eps=1e-5):
    m = x.mean(dim=axis, keepdim=True)
    v = x.var(dim=axis, keepdim=True, unbiased=False)
    return (x - m) / torch.sqrt(v + eps)
def _scatter_add(tgt, idx, src, axis=0):
    return tgt.clone().index_add_(axis, idx, src)
def _segment_sum(src, seg, n):
    out = torch.zeros((n,) + src.shape[1:], dtype=src.dtype)
    return out.index_add_(0, seg, src)
def _pad(x, pw):
    flat = tuple(v for pair in reversed(pw) for v in pair)
    return torch.nn.functional.pad(x, flat)

kernel_name = 'recurrent_scan__ssm_conv_s4d__dense_activation_silu__prompt'

def setup_inputs():

    _w = (lambda a: (lambda t: t.to(torch.bfloat16) if t.is_floating_point() else t)(torch.as_tensor(a)))
    def _A_setup():
        Bsz, L, D, N = 1, 2048, 512, 128
        return {
            "u": _w((lambda *s: torch.randn(*s, dtype=torch.bfloat16) * 0.05)(Bsz, L, D)),
            "log_A_real": _w((lambda *s: torch.randn(*s, dtype=torch.bfloat16) * 6.4)(D, N) * 0.5),
            "A_imag": _w((lambda *s: torch.randn(*s, dtype=torch.bfloat16) * 0.2)(D, N) * 3.14),
            "C_real": _w((lambda *s: torch.randn(*s, dtype=torch.bfloat16) * 0.2)(D, N) / N ** 0.5),
            "C_imag": _w((lambda *s: torch.randn(*s, dtype=torch.bfloat16) * 0.2)(D, N) / N ** 0.5),
            "log_dt": _w((lambda *s: torch.randn(*s, dtype=torch.bfloat16) * 0.2)(D) * 0.5 - 4.0),
            "D_skip": _w((lambda *s: torch.randn(*s, dtype=torch.bfloat16) * 0.2)(D)),
        }
    _A_in = _A_setup()

    def _B_setup():
        B, S, D, F = 1, 2048, 512, 1376
        return {
            "x": _w((lambda *s: torch.randn(*s, dtype=torch.bfloat16) * 0.05)(B, S, D)),
            "w1": _w((lambda *s: torch.randn(*s, dtype=torch.bfloat16) * 0.8)(D, F) * (D ** -0.5)),
            "w2": _w((lambda *s: torch.randn(*s, dtype=torch.bfloat16) * 0.1)(F, D) * (F ** -0.5)),
        }
    _B_in = _B_setup()

    return {
        "A_u": _A_in["u"],
        "A_log_A_real": _A_in["log_A_real"],
        "A_A_imag": _A_in["A_imag"],
        "A_C_real": _A_in["C_real"],
        "A_C_imag": _A_in["C_imag"],
        "A_log_dt": _A_in["log_dt"],
        "A_D_skip": _A_in["D_skip"],
        "B_x": _B_in["x"],
        "B_w1": _B_in["w1"],
        "B_w2": _B_in["w2"],
    }

def reference(A_u, A_log_A_real, A_A_imag, A_C_real, A_C_imag, A_log_dt, A_D_skip, B_x, B_w1, B_w2):
    def _A_ref(u, log_A_real, A_imag, C_real, C_imag, log_dt, D_skip):
        L = u.shape[1]
        dt = torch.exp(log_dt)
        A = -torch.exp(log_A_real) + 1j * A_imag
        C = (C_real + 1j * C_imag) * dt[:, None]
        pos = (lambda x, dt: x.to(dt))(torch.arange(L), log_dt.dtype)
        P = torch.exp((A * dt[:, None])[:, :, None] * pos[None, None, :])
        K = 2.0 * torch.einsum("dn,dnl->dl", C, P).real
        L2 = 2 * L
        u_t = (lambda x, *d: x.permute(*d))(u, 0, 2, 1)
        Kf = (lambda x, *a, **k: torch.fft.rfft(x.float(), *a, **k))(K, L2)
        Uf = (lambda x, *a, **k: torch.fft.rfft(x.float(), *a, **k))(u_t, L2)
        y = (lambda x, *a, **k: torch.fft.irfft(x, *a, **k).to(torch.bfloat16))(Uf * Kf[None, :, :], L2)[:, :, :L]
        y = (lambda x, *d: x.permute(*d))(y, 0, 2, 1)
        return y + u * D_skip[None, None, :]

    def _B_ref(x, w1, w2):
        h = torch.einsum("bsd,df->bsf", x, w1)
        h = _silu(h)
        out = torch.einsum("bsf,fd->bsd", h, w2)
        return out

    x = A_u
    xn = _layernorm(x, axis=-1)
    s = _A_ref(xn, A_log_A_real, A_A_imag, A_C_real, A_C_imag, A_log_dt, A_D_skip)
    g = _silu(_B_ref(xn, B_w1, B_w2))
    return x + s * g
```

```python
KN = "recurrent_scan__ssm_conv_s4d__dense_activation_silu__prompt_kernel"
STAMP_OFF = 0xF000000

class Asm:
    def __init__(self):
        self.lines = []
        self.uid = 0
    def __call__(self, s):
        for l in s.split("\n"):
            l = l.strip()
            if l: self.lines.append("    " + l if not l.endswith(":") else l)
    def label(self, base="L"):
        self.uid += 1
        return f"{base}_{self.uid}"
    def text(self): return "\n".join(self.lines) + "\n"

def wrap(body, grid, block, lds, vgpr=256, accum=256, sgpr=102, name=KN, header=""):
    return f"""{header}; @launch grid=({grid},1,1) block=({block},1,1) lds={lds}
.amdgcn_target "amdgcn-amd-amdhsa--gfx950"
.text
.globl {name}
.p2align 8
.type {name},@function
{name}:
{body}
s_endpgm
.section .rodata,"a"
.p2align 6
.amdhsa_kernel {name}
  .amdhsa_next_free_vgpr {vgpr}
  .amdhsa_next_free_sgpr {sgpr}
  .amdhsa_accum_offset {accum}
  .amdhsa_group_segment_fixed_size 0
  .amdhsa_kernarg_size 104
  .amdhsa_user_sgpr_count 2
  .amdhsa_user_sgpr_kernarg_segment_ptr 1
  .amdhsa_system_sgpr_workgroup_id_x 1
.end_amdhsa_kernel
"""

def srd(a, d, b, nbytes):
    a(f"""s_mov_b32 s{d}, s{b}
    s_and_b32 s{d+1}, s{b+1}, 0xffff
    s_mov_b32 s{d+2}, {nbytes}
    s_mov_b32 s{d+3}, 0x00020000""")

def stamp(a, i, base=70):
    a(f"s_memrealtime s[{base+2*i}:{base+2*i+1}]")

def write_stamps(a, n, ws_srd, wgreg="s2", base=70, vt=1):
    lbl = a.label("Lst")
    a(f"""s_waitcnt lgkmcnt(0)
    v_cmp_eq_u32 vcc, 0, v0
    s_and_saveexec_b64 s[68:69], vcc
    s_cbranch_execz {lbl}
    s_lshl_b32 s67, {wgreg}, 7
    s_add_u32 s67, s67, {STAMP_OFF}
    v_mov_b32 v{vt}, s67""")
    for i in range(n):
        a(f"""v_mov_b32 v{vt+1}, s{base+2*i}
        v_mov_b32 v{vt+2}, s{base+2*i+1}
        buffer_store_dwordx2 v[{vt+1}:{vt+2}], v{vt}, s[{ws_srd}:{ws_srd+3}], 0 offen offset:{8*i}
        s_nop 1""")
    a(f"""{lbl}:
    s_mov_b64 exec, s[68:69]""")
```

```python
import re
REG = re.compile(r'(?<![\w.])(-?)(?:abs\()?([vas])(?:(\d+)|\[(\d+):(\d+)\])')
def regs_of(tok):
    tok = tok.strip()
    out = set()
    if tok in ("vcc",): return {("s","vcc")}
    if tok in ("vcc_lo","vcc_hi"): return {("s","vcc")}
    if tok == "exec": return {("s","exec")}
    if tok == "m0": return {("s","m0")}
    m = re.match(r'^-?(?:abs\(|\|)?([vas])(?:(\d+)|\[(\d+):(\d+)\])\)?\|?$', tok)
    if m:
        k = m.group(1)
        if m.group(2) is not None: return {(k, int(m.group(2)))}
        return {(k, i) for i in range(int(m.group(3)), int(m.group(4))+1)}
    return out
TRANS = ("v_exp_f32","v_log_f32","v_rcp_f32","v_rsq_f32","v_sqrt_f32","v_sin_f32","v_cos_f32")
class I:
    def __init__(self, text):
        self.text = text
        t = text.split(";")[0].strip()
        self.op = t.split()[0] if t else ""
        rest = t[len(self.op):].strip()
        ops = []; cur = ""; depth = 0
        for ch in rest:
            if ch == "[": depth += 1
            if ch == "]": depth -= 1
            if ch == "," and depth == 0: ops.append(cur.strip()); cur = ""
            else: cur += ch
        if cur.strip(): ops.append(cur.strip())
        if ops:
            parts = ops[-1].split()
            ops[-1] = parts[0]; self.mods = parts[1:]
        else: self.mods = []
        self.ops = ops
        op = self.op
        self.label = op.endswith(":")
        self.mfma = op.startswith("v_mfma")
        self.valu = op.startswith("v_") and not self.mfma
        self.trans = any(op.startswith(x) for x in TRANS)
        self.ds = op.startswith("ds_")
        self.vmem = op.startswith("buffer_") or op.startswith("global_")
        self.salu = op.startswith("s_")
        self.w = set(); self.r = set()
        R = [regs_of(o) for o in ops]
        if self.mfma:
            self.w = R[0]; self.A = R[1]; self.B = R[2]; self.C = R[3]; self.r = R[1]|R[2]|R[3]
            self.passes = 8 if "32x32" in op else 4
        elif self.valu:
            if op.startswith("v_permlane") and "swap" in op:
                self.w = R[0]|R[1]; self.r = R[0]|R[1]
            elif op.startswith("v_cmp"):
                self.w = R[0]; self.r = set().union(*R[1:])
            elif op.startswith(("v_add_co","v_sub_co","v_addc_co","v_subb_co")):
                self.w = R[0]|R[1]; self.r = set().union(*R[2:])
            else:
                self.w = R[0]; self.r = set().union(*R[1:]) if len(R) > 1 else set()
                if op.startswith(("v_fmac","v_dot2c","v_writelane")): self.r |= R[0]
                if op.startswith("v_cndmask") and len(ops) == 3: self.r |= {("s","vcc")}
        elif self.ds:
            if op.startswith(("ds_read","ds_bpermute","ds_permute","ds_swizzle")):
                self.w = R[0]; self.r = set().union(*R[1:])
            else: self.r = set().union(*R)
        elif self.vmem:
            self.lds = "lds" in self.mods
            if "store" in op or "atomic" in op or self.lds:
                self.r = set().union(*R)
                if self.lds: self.r |= {("s","m0")}
            else:
                self.w = R[0]; self.r = set().union(*R[1:])
            self.widestore = ("store" in op) and (op.endswith("x4") or op.endswith("x3"))
            if self.widestore:
                self.sdata = R[0] if op.startswith("buffer_") else R[1]
        elif self.salu:
            if op.startswith(("s_cmp","s_cbranch","s_branch","s_waitcnt","s_nop","s_barrier","s_sleep","s_setprio","s_endpgm")):
                self.r = set().union(*R) if R else set()
            else:
                self.w = R[0] if R else set(); self.r = set().union(*R[1:]) if len(R) > 1 else set()
                if "saveexec" in op: self.w |= {("s","exec")}
        self.states = 1
        if op == "s_nop": self.states = int(ops[0]) + 1
        if self.label: self.states = 0
def isv(s): return {x for x in s if x[0] in "va"}
def iss(s): return {x for x in s if x[0] == "s"}
def need(p, c):
    n = 0
    if p.valu:
        wv = isv(p.w); ws = iss(p.w)
        if c.mfma and wv & c.r: n = max(n, 2)
        if p.trans and c.valu and not c.trans and (wv & c.r): n = max(n, 1)
        if p.trans and (c.mfma) and (wv & c.r): n = max(n, 2)
        if c.valu and (c.op.startswith("v_permlane") or "dpp" in c.op or any(m.startswith(("row_","quad_perm","wave_")) for m in c.mods)) and wv & c.r: n = max(n, 2)
        if c.valu and c.op.startswith(("v_readlane","v_readfirstlane")) and wv & c.r: n = max(n, 1)
        if ws:
            if c.valu and ws & c.r: n = max(n, 4 if c.op.startswith(("v_readlane","v_writelane")) else 2)
            if c.mfma and ws & c.r: n = max(n, 2)
            if c.vmem and ws & c.r: n = max(n, 5)
            if c.salu and ws & c.r: n = max(n, 1)
        if "sdwa" in p.op and c.valu and (wv & (c.r|c.w)): n = max(n, 1)
    if p.mfma:
        big = 12 if p.passes == 8 else 8
        ov = 10 if p.passes == 8 else 6
        if c.mfma:
            if p.w & (c.A | c.B): n = max(n, big)
            if p.w & c.C:
                if not (p.w == c.C and p.passes == c.passes): n = max(n, ov)
            elif p.w & c.w: n = max(n, ov)
        elif c.valu or c.ds or c.vmem:
            if p.w & (c.r | c.w): n = max(n, big)
        if c.valu and (p.C & c.w): n = max(n, 7 if p.passes == 8 else 3)
    if p.vmem and getattr(p, "widestore", False):
        if (c.valu) and (p.sdata & c.w): n = max(n, 2)
        elif (c.ds or c.vmem or c.mfma) and (p.sdata & c.w): n = max(n, 1)
    if p.ds and p.op.startswith(("ds_write_b128","ds_write_b96")):
        if c.valu and (isv(p.r) & c.w): n = max(n, 1)
    if p.salu and ("s","m0") in p.w and c.vmem and getattr(c, "lds", False): n = max(n, 1)
    return n
def fix(lines):
    out = []; hist = []
    nins = 0
    for ln in lines:
        s = ln.strip()
        if not s or s.startswith((";", ".")): out.append(ln); continue
        c = I(s)
        if c.label: out.append(ln); hist.append(c); continue
        dist = 0; req = 0
        for p in reversed(hist[-24:]):
            nd = need(p, c) - dist
            if nd > req: req = nd
            dist += p.states
            if dist >= 20: break
        while req > 0:
            k = min(req, 16)
            nop = I(f"s_nop {k-1}"); out.append(f"    s_nop {k-1}"); hist.append(nop); req -= k; nins += 1
        out.append(ln); hist.append(c)
    return out, nins
```

```python
import sys
from asmlib import Asm, KN, STAMP_OFF
import hz

WS_XNT = 0x000000
WS_ST  = 0x200000
WS_H   = 0x400000
HRB    = 86 * 2048
WS_FX  = 0xA00000
WS_FH  = 0xA02000
WS_FS  = 0xA04000
WS_EP  = 0xA10000
WS_DBG = 0xB00000
KG = [0, 17408, 8704, 26112]
LX = 34816; XS = 1056
RING = 102400; RSL = 3072; RST = 4
STAT = 151552
U0 = 152064; USZ = 4608
CS = 17408
W2ST = 33792; W2SZ = 28672
LDS_TOTAL = 161280
OOFF = 4160
OOB = 0x40000000
L2E = 0x3FB8AA3B; L2E_LO = 0x32A57060; LN2 = 0x3F317218

SX, SW1, SW2, SOUT, SWS, SH = 32, 36, 40, 44, 48, 52
RB1, CB1, RB2, CB2, CW, WV, TAG, NTAG = 56, 57, 58, 59, 60, 61, 62, 63

class G(Asm):
    def __init__(self, stamps=False):
        super().__init__()
        self.vmq = []; self.lgq = []; self.stamps = stamps; self.nst = 0
    def vm(self, text, tag):
        self(text); self.vmq.append(tag); assert len(self.vmq) <= 63, "vmcnt overflow"
    def vmwait(self, tag):
        if tag not in self.vmq: return
        i = len(self.vmq) - 1 - self.vmq[::-1].index(tag)
        n = len(self.vmq) - 1 - i
        self(f"s_waitcnt vmcnt({n})"); self.vmq = self.vmq[i+1:]
    def vm0(self):
        self("s_waitcnt vmcnt(0)"); self.vmq = []
    def lg(self, text, tag):
        self(text); self.lgq.append(tag)
    def lgwait(self, tag):
        if tag not in self.lgq: return
        i = len(self.lgq) - 1 - self.lgq[::-1].index(tag)
        n = len(self.lgq) - 1 - i
        if n > 15: n = 15; i = len(self.lgq) - 1 - n
        self(f"s_waitcnt lgkmcnt({n})"); self.lgq = self.lgq[i+1:]
    def lg0(self):
        self("s_waitcnt lgkmcnt(0)"); self.lgq = []
    def barrier(self):
        self.lg0(); self("s_barrier")
    def stamp(self):
        if self.stamps:
            i = self.nst; self.nst += 1
            assert i < 14
            self(f"s_memrealtime s[{70+2*i}:{71+2*i}]"); self.lg0()

def vr(b, n=4): return f"v[{b}:{b+n-1}]"
def ar(b, n=4): return f"a[{b}:{b+n-1}]"
def sr(b, n=4): return f"s[{b}:{b+n-1}]"

def srd(a, d, b, nbytes):
    a(f"""s_mov_b32 s{d}, s{b}
    s_and_b32 s{d+1}, s{b+1}, 0xffff
    s_mov_b32 s{d+2}, {nbytes}
    s_mov_b32 s{d+3}, 0x00020000""")

def bf16r(a, d, s):
    a(f"v_cvt_pk_bf16_f32 v{d}, v{s}, v{s}")
    a(f"v_and_b32 v{d}, 0xffff0000, v{d}")

def expc(a, d, x, t0, t1):
    a(f"""v_mul_f32 v{t0}, s64, v{x}
    v_fma_f32 v{t1}, v{x}, s64, -v{t0}
    v_fmac_f32 v{t1}, s65, v{x}
    v_exp_f32 v{d}, v{t0}
    v_mul_f32 v{t1}, s66, v{t1}
    v_fmac_f32 v{d}, v{d}, v{t1}""")

def cmul(a, d, x, y):
    assert d != x
    a(f"v_pk_mul_f32 {vr(d,2)}, {vr(x,2)}, {vr(y,2)} op_sel:[0,0] op_sel_hi:[0,1]")
    a(f"v_pk_fma_f32 {vr(d,2)}, {vr(x,2)}, {vr(y,2)}, {vr(d,2)} op_sel:[1,1,0] op_sel_hi:[1,0,1] neg_lo:[0,1,0]")

def bc(reg):
    return (vr(reg & ~1, 2), reg & 1)

def poll(a, vaddr, vd, maskset, name, first_issued=False):
    lp = a.label("Lpoll" + name); dn = a.label("Lpd" + name)
    a(maskset)
    a("s_mov_b32 s3, 0x40000")
    if first_issued:
        ck = a.label("Lpc" + name)
        a(f"s_branch {ck}")
    a(f"{lp}:")
    a(f"buffer_load_dwordx2 {vr(vd,2)}, v{vaddr}, {sr(SWS)}, 0 offen sc1")
    if first_issued: a(f"{ck}:")
    a(f"""s_waitcnt vmcnt(0)
    v_cmp_ne_u32 vcc, s{TAG}, v{vd}
    v_cmp_ne_u32 s[68:69], s{NTAG}, v{vd+1}
    s_or_b64 vcc, vcc, s[68:69]
    s_cbranch_vccz {dn}
    s_sub_u32 s3, s3, 1
    s_cbranch_scc1 {dn}
    s_sleep 1
    s_branch {lp}
    {dn}:
    s_mov_b64 exec, -1""")

def flag(a, soff, vt, tag):
    a(f"""v_mov_b32 v{vt}, s{TAG}
    v_mov_b32 v{vt+1}, s{NTAG}
    v_mov_b32 v{vt+2}, s{soff}
    s_mov_b64 exec, 1""")
    a.vm(f"buffer_store_dwordx2 {vr(vt,2)}, v{vt+2}, {sr(SWS)}, 0 offen sc1", tag)
    a("s_mov_b64 exec, -1")

def units(cb):
    u0 = 11 * cb - (1 if cb == 7 else 0); sz = 11 if cb < 6 else 10
    return u0, sz

def dump_lds(a, off, nbytes, wsoff):
    a.barrier()
    a(f"""s_mul_i32 s64, s2, 0x28000
    s_add_u32 s64, s64, {WS_DBG + wsoff}
    v_lshlrev_b32 v250, 4, v0""")
    for i in range(0, nbytes, 4096):
        a(f"v_add_u32 v251, {off + i}, v250")
        a(f"ds_read_b128 v[252:255], v251")
        a("s_waitcnt lgkmcnt(0)")
        a(f"v_cmp_gt_u32 vcc, {nbytes - i}, v250")
        a("s_and_saveexec_b64 s[68:69], vcc")
        a(f"buffer_store_dwordx4 v[252:255], v250, {sr(SWS)}, s64 offen")
        a("s_waitcnt vmcnt(0)")
        a("s_mov_b64 exec, s[68:69]")
        a("s_add_u32 s64, s64, 4096")

def gen(stop=99, stamps=False, map1=1, touch1=True, touch2=True):
    a = G(stamps)
    if stamps: a("s_memrealtime s[70:71]"); a.nst = 1
    a(f"""s_cmp_ge_u32 s2, 256
    s_cbranch_scc1 L_end
    s_load_dwordx16 s[4:19], s[0:1], 0
    s_load_dwordx8 s[20:27], s[0:1], 64
    s_load_dwordx2 s[28:29], s[0:1], 96
    v_and_b32 v1, 63, v0
    v_lshrrev_b32 v2, 6, v0
    v_lshlrev_b32 v7, 4, v1
    v_readfirstlane_b32 s{WV}, v2
    s_and_b32 s64, s2, 7
    s_lshr_b32 s65, s2, 3
    s_and_b32 s66, s65, 3
    s_lshr_b32 s{CB2}, s65, 2
    s_lshl_b32 s{RB2}, s64, 2
    s_add_u32 s{RB2}, s{RB2}, s66""")
    if map1:
        a(f"""s_and_b32 s{CB1}, s64, 1
        s_lshl_b32 s{CB1}, s{CB1}, 2
        s_add_u32 s{CB1}, s{CB1}, s66
        s_lshr_b32 s{RB1}, s64, 1
        s_lshl_b32 s{RB1}, s{RB1}, 3
        s_add_u32 s{RB1}, s{RB1}, s{CB2}""")
    else:
        a(f"""s_mov_b32 s{CB1}, s{CB2}
        s_mov_b32 s{RB1}, s{RB2}""")
    a(f"""s_lshl_b32 s{CW}, s{CB1}, 5
    s_add_u32 s{CW}, s{CW}, s{RB1}""")
    a(f"""s_lshl_b32 s67, s{CW}, 9
    s_lshl_b32 s68, s{WV}, 7
    s_add_u32 s67, s67, s68
    v_lshlrev_b32 v20, 1, v1
    v_add_u32 v20, s67, v20""")
    a(f"""s_mul_i32 s98, s{CB1}, 11
    s_cmp_eq_u32 s{CB1}, 7
    s_cselect_b32 s67, 1, 0
    s_sub_u32 s98, s98, s67
    s_mul_i32 s67, s{WV}, 3
    s_add_u32 s98, s98, s67
    s_cmp_lt_u32 s{CB1}, 6
    s_cselect_b32 s99, 11, 10
    s_sub_u32 s99, s99, s67
    s_min_u32 s99, s99, 3
    s_lshl_b32 s67, s98, 5
    s_lshl_b32 s68, s99, 1""")
    for q in range(3):
        a(f"""v_add_u32 v8, {q*64}, v1
        v_mul_u32_u24 v9, 43691, v8
        v_lshrrev_b32 v9, 18, v9
        v_mul_u32_u24 v10, 6, v9
        v_sub_u32 v10, v8, v10
        v_and_b32 v11, 0x13, v9
        v_and_b32 v12, 4, v9
        v_lshl_or_b32 v11, v12, 1, v11
        v_and_b32 v12, 8, v9
        v_lshrrev_b32 v12, 1, v12
        v_or_b32 v11, v11, v12
        v_mul_u32_u24 v11, 2752, v11
        v_lshl_add_u32 v11, v10, 4, v11
        v_add_u32 v11, s67, v11
        v_mov_b32 v12, {OOB}
        v_cmp_gt_u32 vcc, s68, v10
        v_cndmask_b32 v{4+q}, v12, v11, vcc""")
    if map1:
        a(f"""v_lshrrev_b32 v8, 4, v0
        s_lshl_b32 s67, s65, 4
        v_add_u32 v8, s67, v8
        v_mul_u32_u24 v8, 2752, v8
        v_and_b32 v9, 15, v0
        v_lshl_add_u32 v8, v9, 7, v8
        s_and_b32 s67, s64, 1
        s_mul_i32 s67, s67, 1408
        v_add_u32 v8, s67, v8
        v_mov_b32 v12, {OOB}
        v_cmp_gt_u32 vcc, 12, v9
        v_cndmask_b32 v21, v12, v8, vcc""")
    else:
        a(f"""s_mul_i32 s67, s65, 44032
        v_lshlrev_b32 v21, 7, v0
        v_add_u32 v21, s67, v21""")
    a("s_mov_b32 s100, s65")
    a("s_waitcnt lgkmcnt(0)")
    a.vm("global_load_ushort v16, v20, s[6:7]", "par")
    a.vm("global_load_ushort v17, v20, s[8:9]", "par")
    a.vm("global_load_ushort v18, v20, s[10:11]", "par")
    a.vm("global_load_ushort v19, v20, s[12:13]", "par")
    srd(a, SX, 4, 2097152)
    a(f"""s_lshl_b32 s64, s{RB1}, 16
    s_lshl_b32 s65, s{WV}, 14
    s_add_u32 s64, s64, s65
    s_mul_i32 s65, s{WV}, {16*XS}
    s_add_u32 s65, s65, {LX}""")
    for r in range(16):
        a(f"s_add_u32 m0, s65, {r*XS}")
        a(f"s_add_u32 s66, s64, {r*1024}")
        a.vm(f"buffer_load_dwordx4 v7, {sr(SX)}, s66 offen lds", "x")
    srd(a, SW1, 20, 1409024)
    a(f"""s_lshl_b32 s66, s{CW}, 2
    s_load_dword s30, s[14:15], s66
    s_load_dword s31, s[16:17], s66
    s_add_u32 s64, s28, {WS_EP}
    s_addc_u32 s65, s29, 0
    s_load_dword s{TAG}, s[64:65], 0""")
    if touch1:
        a.vm(f"buffer_load_dword v22, v21, {sr(SW1)}, 0 offen", "t1")
        if not map1:
            a(f"""v_add_u32 v21, 32768, v21
            v_mov_b32 v12, {OOB}
            v_cmp_gt_u32 vcc, 88, v0
            v_cndmask_b32 v21, v12, v21, vcc""")
            a.vm(f"buffer_load_dword v23, v21, {sr(SW1)}, 0 offen", "t1")
    a(f"""s_mul_i32 s101, s{WV}, {RST*RSL}
    s_add_u32 s101, s101, {RING}""")
    def ring_dma(stage, q):
        a(f"s_add_u32 m0, s101, {(stage % RST)*RSL + q*1024}")
        a(f"s_mov_b32 s66, {stage*32*2752}")
        a.vm(f"buffer_load_dwordx4 v{4+q}, {sr(SW1)}, s66 offen lds", f"w1s{stage}")
    for st in range(RST):
        for q in range(3): ring_dma(st, q)
    srd(a, SW2, 22, 1409024)
    srd(a, SOUT, 24, 2097152)
    srd(a, SWS, 28, 268435456)
    a(f"""s_mul_i32 s66, s{RB2}, {HRB}
    s_add_u32 s66, s66, {WS_H}
    s_add_u32 s{SH}, s28, s66
    s_addc_u32 s{SH+1}, s29, 0
    s_and_b32 s{SH+1}, s{SH+1}, 0xffff
    s_mov_b32 s{SH+2}, {HRB}
    s_mov_b32 s{SH+3}, 0x00020000""")
    a.stamp()
    Z1, Z2, Z4, Z8, Z256, CC, C0, C1, Q0, Q1 = 32, 34, 36, 38, 40, 42, 44, 46, 48, 50
    PK = [52, 53, 54, 55]; VW, VRD = 56, 57; A2, BR, T0, T1, DT = 58, 59, 60, 61, 62
    EB, EA, KACC, KP = 64, 96, 128, 144
    a(f"""s_mov_b32 s64, {L2E}
    s_mov_b32 s65, {L2E_LO}
    s_mov_b32 s66, {LN2}""")
    a(f"""s_and_b32 s67, s{WV}, 1
    s_mul_i32 s67, s67, 17408
    s_lshr_b32 s68, s{WV}, 1
    s_mul_i32 s69, s68, 8704
    s_add_u32 s67, s67, s69
    v_lshlrev_b32 v{VW}, 2, v1
    v_add_u32 v{VW}, s67, v{VW}
    v_and_b32 v{T0}, 31, v1
    v_mul_u32_u24 v{T0}, 272, v{T0}
    v_lshrrev_b32 v{T1}, 5, v1
    v_lshl_add_u32 v{T0}, v{T1}, 4, v{T0}
    v_add_u32 v{VRD}, s67, v{T0}
    s_waitcnt lgkmcnt(0)
    s_add_u32 s{TAG}, s{TAG}, 1
    s_not_b32 s{NTAG}, s{TAG}
    s_lshl_b32 s68, s68, 4
    s_lshr_b32 s30, s30, s68
    s_lshl_b32 s30, s30, 16
    s_lshr_b32 s31, s31, s68
    s_lshl_b32 s31, s31, 16
    v_mov_b32 v{A2}, s30""")
    expc(a, DT, A2, T0, T1); bf16r(a, DT, DT)
    a.vmwait("par")
    a.stamp()
    a(f"""v_lshlrev_b32 v16, 16, v16
    v_lshlrev_b32 v17, 16, v17
    v_lshlrev_b32 v18, 16, v18
    v_lshlrev_b32 v19, 16, v19""")
    expc(a, A2, 16, T0, T1); bf16r(a, A2, A2)
    a(f"""v_mul_f32 v{A2}, v{A2}, v{DT}
    v_mul_f32 v{BR}, v17, v{DT}
    v_mul_f32 v{CC}, v18, v{DT}
    v_mul_f32 v{CC+1}, v19, v{DT}
    v_mul_f32_e64 v{A2}, -v{A2}, s64
    v_mul_f32 v{BR}, 0.15915494, v{BR}
    v_add_f32 v{CC}, v{CC}, v{CC}
    v_add_f32 v{CC+1}, v{CC+1}, v{CC+1}""")
    def zdirect(z, P):
        if P == 1:
            a(f"""v_exp_f32 v{T0}, v{A2}
            v_fract_f32 v{T1}, v{BR}""")
        else:
            a(f"""v_mul_f32 v{T0}, {float(P)}, v{A2}
            v_mul_f32 v{T1}, {float(P)}, v{BR}
            v_exp_f32 v{T0}, v{T0}
            v_fract_f32 v{T1}, v{T1}""")
        a(f"""v_cos_f32 v{z}, v{T1}
        v_sin_f32 v{z+1}, v{T1}
        v_pk_mul_f32 {vr(z,2)}, {vr(z,2)}, {vr(T0,2)} op_sel:[0,0] op_sel_hi:[1,0]""")
    zdirect(Z8, 8); zdirect(Z1, 1); zdirect(Z256, 256)
    pkc = [0]
    def emit(val, row, neg):
        p = PK[pkc[0] % 4]; pkc[0] += 1
        a(f"v_cvt_pk_bf16_f32 v{p}, v{val}, {'-' if neg else ''}v{val+1}")
        a.lg(f"ds_write_b32 v{VW}, v{p} offset:{row*272}", "kw")
    a(f"v_mov_b32 v{PK[3]}, 0x3f80")
    a.lg(f"ds_write_b32 v{VW}, v{PK[3]} offset:0", "kw")
    emit(Z8, 1, False)
    cur = Z8; pp = [C0, C1]
    for n in range(2, 32):
        d = pp[n % 2]; cmul(a, d, cur, Z8); emit(d, n, False); cur = d
        if n == 4: cmul(a, Z2, Z1, Z1)
        if n == 6: cmul(a, Z4, Z2, Z2)
    for s in range(8):
        a.lg(f"ds_read_b128 {vr(EB+4*s)}, v{VRD} offset:{32*s}", "eb")
    def mrow(hh, r): return (r & 3) + 8 * (r >> 2) + 4 * hh
    emit(CC, mrow(0, 7), True)
    cur = CC
    for i in range(1, 9):
        d = pp[i % 2]; cmul(a, d, cur, Z1); emit(d, mrow(0, 7 + i), True); cur = d
    qq = [Q0, Q1]
    cmul(a, Q0, CC, Z256); emit(Q0, mrow(1, 7), True)
    cur = Q0
    for i in range(1, 5):
        d = pp[i % 2]; cmul(a, d, cur, Z2); emit(d, mrow(1, 7 + i), True); cur = d
    q = Q0
    for hh in range(2):
        qn = Q1 if q == Q0 else Q0
        cmul(a, qn, q, Z256); q = qn; emit(q, mrow(hh, 4), True)
        cmul(a, C0, q, Z4); emit(C0, mrow(hh, 5), True)
        cmul(a, C1, q, Z8); emit(C1, mrow(hh, 6), True)
    for z in range(4):
        qn = Q1 if q == Q0 else Q0
        cmul(a, qn, q, Z256); q = qn
        hh, r = z >> 1, 2 * (z & 1)
        emit(q, mrow(hh, r), True)
        d = pp[z % 2]; cmul(a, d, q, Z8); emit(d, mrow(hh, r + 1), True)
    for s in range(8):
        a.lg(f"ds_read_b128 {vr(EA+4*s)}, v{VRD} offset:{32*s}", f"ea{s}")
    for s in range(8):
        a.lgwait(f"ea{s}")
        a(f"v_mfma_f32_32x32x16_bf16 {vr(KACC,16)}, {vr(EA+4*s)}, {vr(EB+4*s)}, {vr(KACC,16) if s else 0}")
    a(f"""s_lshr_b32 s68, s{WV}, 1
    s_mul_i32 s64, s68, {USZ}
    s_add_u32 s64, s64, {U0}
    s_mul_i32 s65, s68, 8704
    s_add_u32 s66, s65, 17408
    s_bitcmp1_b32 s{WV}, 0
    s_cselect_b32 s67, s66, s64
    s_cselect_b32 s69, s64, s66
    v_add_u32 v{T0}, s67, v7
    v_add_u32 v{T1}, s69, v7""")
    for i in range(4):
        a.lg(f"ds_write_b128 v{T0}, {vr(KACC+4*i)} offset:{1024*i}", "kx")
    a.barrier()
    for i in range(4):
        a.lg(f"ds_read_b128 {vr(KP+4*i)}, v{T1} offset:{1024*i}", f"kp{i}")
    AD3, AD2 = 58, 59
    a(f"""v_and_b32 v{T0}, 31, v1
    v_lshlrev_b32 v{T0}, 4, v{T0}
    v_lshrrev_b32 v{T1}, 5, v1
    s_add_u32 s64, s65, 1520
    s_add_u32 s66, s65, 3056
    v_lshl_add_u32 v{AD3}, v{T1}, 10, v{T0}
    v_sub_u32 v{AD3}, s64, v{AD3}
    v_lshl_add_u32 v{AD2}, v{T1}, 9, v{T0}
    v_sub_u32 v{AD2}, s66, v{AD2}
    v_and_b32 v{T0}, 1, v1
    v_cmp_eq_u32 vcc, 1, v{T0}""")
    for i in range(4):
        a.lgwait(f"kp{i}")
        a(f"v_pk_add_f32 {vr(KACC+4*i,2)}, {vr(KACC+4*i,2)}, {vr(KP+4*i,2)}")
        a(f"v_pk_add_f32 {vr(KACC+4*i+2,2)}, {vr(KACC+4*i+2,2)}, {vr(KP+4*i+2,2)}")
    def blk(E, O, addr, off, o0):
        for i, (lo, hi) in enumerate(E): a(f"v_cvt_pk_bf16_f32 v{o0+i}, v{lo}, v{hi}")
        a.lg(f"ds_write_b128 v{addr}, {vr(o0)} offset:{off}", "kb")
        for i, (lo, hi) in enumerate(O): a(f"v_cvt_pk_bf16_f32 v{o0+4+i}, v{lo}, v{hi}")
        a.lg(f"ds_write_b128 v{addr}, {vr(o0+4)} offset:{off+OOFF}", "kb")
    V = lambda r: KACC + r
    a(f"""s_bitcmp1_b32 s{WV}, 0
    s_cbranch_scc1 L_kodd""")
    save_lg = list(a.lgq)
    for ps, off in ((0, 512), (2, 0)):
        V0, V1 = V(ps), V(ps + 1); W = 60 + ps // 2
        a(f"v_cndmask_b32 v{W}, v{V0}, v{V1}, vcc")
        blk([(V1, V1), (V1, W), (V0, V0), (V0, V0)], [(V1, V1), (V1, V1), (W, V0), (V0, V0)], AD3, off, 160 + 4 * ps)
    a("s_branch L_kdone")
    a("L_kodd:")
    a("s_nop 1")
    A_, B_, C_ = V(4), V(5), V(6)
    blk([(C_, C_), (B_, B_), (B_, A_), (A_, A_)], [(C_, C_), (C_, B_), (B_, B_), (A_, A_)], AD2, 0, 160)
    a("s_mov_b32 exec_lo, 0")
    for d, s in ((15, 11), (14, 11), (13, 10), (12, 9), (11, 9), (10, 9), (9, 8), (8, 7)):
        a(f"v_mov_b32 v{V(d)}, v{V(s)}")
    a("s_mov_b32 exec_lo, -1")
    K = lambda i: V(7 + i)
    blk([(K(7), K(6)), (K(5), K(4)), (K(3), K(2)), (K(1), K(0))], [(K(8), K(7)), (K(6), K(5)), (K(4), K(3)), (K(2), K(1))], AD2, 1024, 168)
    a(f"""v_mov_b32 v176, 0
    v_mov_b32 v177, 0
    v_mov_b32 v178, 0
    v_mov_b32 v179, 0
    v_cvt_pk_bf16_f32 v180, v{K(0)}, v176
    v_mov_b32 v181, 0
    v_mov_b32 v182, 0
    v_mov_b32 v183, 0
    v_mov_b32 v184, s65
    s_mov_b64 exec, 1
    ds_write_b128 v184, v[176:179] offset:4096
    ds_write_b128 v184, v[176:179] offset:4112
    ds_write_b128 v184, v[180:183] offset:{OOFF+4096}
    ds_write_b128 v184, v[176:179] offset:{OOFF+4112}
    s_mov_b64 exec, -1""")
    a("L_kdone:")
    a.lgq = ["kb"]
    a.stamp()
    if stop == 1:
        dump_lds(a, 0, 17408, 0); return finish(a)
    XF = 64; ONES = 124; S1, S2 = 128, 132
    a(f"""v_and_b32 v32, 15, v1
    v_mul_u32_u24 v2, {XS}, v32
    v_lshrrev_b32 v33, 4, v1
    v_lshl_add_u32 v2, v33, 4, v2
    v_add_u32 v2, {LX}, v2
    s_mul_i32 s64, s{WV}, {16*XS}
    v_add_u32 v34, s64, v2
    v_mov_b32 v136, 0x3f803f80
    v_mov_b32 v137, 0x3f803f80
    v_mov_b32 v138, 0x3f803f80
    v_mov_b32 v139, 0x3f803f80""")
    a.vmwait("x")
    a.barrier()
    a.stamp()
    for s in range(12):
        a.lg(f"ds_read_b128 {vr(XF+4*s)}, v34 offset:{64*s}", f"xs{s}")
    for s in range(16):
        a.lgwait(f"xs{s}")
        a(f"v_mfma_f32_16x16x32_bf16 {vr(S1)}, v[136:139], {vr(XF+4*s)}, {vr(S1) if s else 0}")
        a(f"v_mfma_f32_16x16x32_bf16 {vr(S2)}, {vr(XF+4*s)}, {vr(XF+4*s)}, {vr(S2) if s else 0}")
        if s + 12 < 16:
            a.lg(f"ds_read_b128 {vr(XF+4*(s+12))}, v34 offset:{64*(s+12)}", f"xs{s+12}")
    a(f"""v_lshrrev_b32 v35, 2, v32
    v_lshl_add_u32 v35, v33, 3, v35
    v_mul_u32_u24 v35, {XS}, v35
    v_and_b32 v36, 3, v1
    v_lshl_add_u32 v35, v36, 3, v35
    s_lshl_b32 s64, s{CB1}, 7
    s_lshl_b32 s65, s{WV}, 5
    s_add_u32 s64, s64, s65
    s_add_u32 s64, s64, {LX}
    v_add_u32 v35, s64, v35
    v_lshlrev_b32 v37, 5, v33
    v_add_u32 v37, {STAT}, v37
    v_cmp_eq_u32 vcc, 1, v36
    v_cmp_eq_u32 s[64:65], 2, v36
    v_cmp_eq_u32 s[66:67], 3, v36
    v_cndmask_b32 v40, v{S2}, v{S2+1}, vcc
    v_cndmask_b32 v40, v40, v{S2+2}, s[64:65]
    v_cndmask_b32 v40, v40, v{S2+3}, s[66:67]
    v_mul_f32 v41, 0x3b000000, v{S1}
    v_mul_f32 v40, 0x3b000000, v40
    v_fma_f32 v40, -v41, v41, v40
    v_max_f32 v40, 0, v40""")
    bf16r(a, 41, 41); bf16r(a, 40, 40)
    a("v_add_f32 v40, 0x3727c5ac, v40")
    bf16r(a, 40, 40)
    a("v_sqrt_f32 v40, v40")
    bf16r(a, 40, 40)
    a(f"""v_rcp_f32 v40, v40
    v_lshrrev_b32 v38, 2, v32
    v_cmp_eq_u32 vcc, v38, v33
    s_lshl_b32 s64, s{WV}, 6
    s_add_u32 s64, s64, {STAT}
    v_lshlrev_b32 v39, 2, v32
    v_add_u32 v39, s64, v39
    s_and_saveexec_b64 s[68:69], vcc""")
    a.lg("ds_write_b32 v39, v41", "st")
    a.lg("ds_write_b32 v39, v40 offset:256", "st")
    a("s_mov_b64 exec, s[68:69]")
    XT = 64
    for j in range(2):
        a.lg(f"ds_read_b64_tr_b16 {vr(XT+4*j,2)}, v35 offset:{j*32*XS}", "xt")
        a.lg(f"ds_read_b64_tr_b16 {vr(XT+4*j+2,2)}, v35 offset:{j*32*XS+4*XS}", "xt")
    a.barrier()
    SM, SRD_ = 72, 88
    for j in range(2):
        a.lg(f"ds_read_b128 {vr(SM+8*j)}, v37 offset:{128*j}", f"sm{j}")
        a.lg(f"ds_read_b128 {vr(SM+8*j+4)}, v37 offset:{128*j+16}", f"sm{j}")
        a.lg(f"ds_read_b128 {vr(SRD_+8*j)}, v37 offset:{256+128*j}", f"sm{j}")
        a.lg(f"ds_read_b128 {vr(SRD_+8*j+4)}, v37 offset:{256+128*j+16}", f"sm{j}")
    a(f"""s_lshl_b32 s64, s{CB1}, 6
    s_lshl_b32 s65, s{WV}, 4
    s_add_u32 s64, s64, s65
    s_lshl_b32 s64, s64, 12
    s_lshl_b32 s65, s{RB1}, 7
    s_add_u32 s64, s64, s65
    s_add_u32 s64, s64, {WS_XNT}
    v_lshlrev_b32 v38, 12, v32
    v_lshl_add_u32 v38, v33, 4, v38
    v_add_u32 v38, s64, v38""")
    for j in range(2):
        a.lgwait(f"sm{j}")
        for i in range(4):
            x = XT + 4*j + i; t = 104 + 2*(i % 2)
            a(f"""v_lshlrev_b32 v{t}, 16, v{x}
            v_and_b32 v{t+1}, 0xffff0000, v{x}
            v_pk_add_f32 {vr(t,2)}, {vr(t,2)}, {vr(SM+8*j+2*i,2)} neg_lo:[0,1] neg_hi:[0,1]
            v_cvt_pk_bf16_f32 v{x}, v{t}, v{t+1}
            v_lshlrev_b32 v{t}, 16, v{x}
            v_and_b32 v{t+1}, 0xffff0000, v{x}
            v_pk_mul_f32 {vr(t,2)}, {vr(t,2)}, {vr(SRD_+8*j+2*i,2)}
            v_cvt_pk_bf16_f32 v{108+4*j+i}, v{t}, v{t+1}""")
        a.vm(f"buffer_store_dwordx4 {vr(108+4*j)}, v38, {sr(SWS)}, 0 offen offset:{64*j} sc1", "xnt")
    a.stamp()
    if stop == 2:
        a.vm0(); return finish(a)
    ACC, CSM, ONES, AB, BB = 64, 112, 124, 128, 152
    a(f"""v_lshrrev_b32 v40, 1, v33
    v_lshlrev_b32 v40, 4, v40
    v_and_b32 v41, 1, v33
    v_lshl_add_u32 v40, v41, 2, v40
    v_lshrrev_b32 v41, 2, v32
    v_add_u32 v40, v40, v41
    v_mul_u32_u24 v40, 96, v40
    v_lshl_add_u32 v40, v36, 3, v40
    v_add_u32 v3, s101, v40
    v_mov_b32 v{ONES}, 0x3f803f80
    v_mov_b32 v{ONES+1}, 0x3f803f80
    v_mov_b32 v{ONES+2}, 0x3f803f80
    v_mov_b32 v{ONES+3}, 0x3f803f80""")
    a(f"""s_lshl_b32 s96, s{CB1}, 2
    s_add_u32 s96, s96, s{WV}
    s_lshl_b32 s97, s{RB1}, 5
    s_add_u32 s97, s97, s96
    s_lshl_b32 s97, s97, 3
    s_add_u32 s97, s97, {WS_FH}
    s_lshl_b32 s96, s96, 5
    s_add_u32 s96, s96, s{RB1}
    s_lshl_b32 s96, s96, 3
    s_add_u32 s96, s96, {WS_FX}""")
    a(f"""s_lshl_b32 s64, s{CB1}, 2
    s_lshr_b32 s65, s{RB1}, 3
    s_add_u32 s64, s64, s65
    s_lshl_b32 s64, s64, 8
    s_add_u32 s64, s64, {WS_FX}
    v_lshlrev_b32 v24, 3, v1
    v_add_u32 v24, s64, v24
    s_mul_i32 s64, s100, 44032
    v_subrev_u32 v21, 128, v0
    v_lshlrev_b32 v21, 7, v21
    v_add_u32 v21, s64, v21
    v_mov_b32 v41, {OOB}
    v_cmp_gt_u32 vcc, 128, v0
    v_cndmask_b32 v21, v21, v41, vcc
    v_add_u32 v25, 32768, v21
    v_cmp_gt_u32 vcc, {128+88}, v0
    v_cndmask_b32 v25, v41, v25, vcc""")
    def rd_x(step, tt):
        b = BB + 16*(step % 2) + 4*tt
        a.lg(f"ds_read_b128 {vr(b)}, v2 offset:{tt*16*XS + 64*step}", f"f{step}")
    def rd_w(step, u, h):
        b = AB + 12*(step % 2) + 4*u + 2*h
        a.lg(f"ds_read_b64_tr_b16 {vr(b,2)}, v3 offset:{(step % RST)*RSL + 32*u + 768*h}", f"f{step}")
    for tt in range(4): rd_x(0, tt)
    a.vmwait("w1s0")
    for u in range(3):
        rd_w(0, u, 0); rd_w(0, u, 1)
    for k in range(16):
        fill = []
        if k + RST < 16:
            for q in range(3): fill.append(lambda q=q: ring_dma(k + RST, q))
        if k == 12:
            fill.append(lambda: a.vm(f"buffer_load_dwordx2 v[22:23], v24, {sr(SWS)}, 0 offen sc1", "pfx"))
            if touch2:
                fill.append(lambda: a.vm(f"buffer_load_dword v26, v21, {sr(SW2)}, 0 offen", "t2"))
                fill.append(lambda: a.vm(f"buffer_load_dword v27, v21, {sr(SW2)}, 0 offen offset:0", "t2") if False else (a("s_mov_b32 s66, 16384"), a.vm(f"buffer_load_dword v27, v21, {sr(SW2)}, s66 offen", "t2")))
                fill.append(lambda: a.vm(f"buffer_load_dword v28, v25, {sr(SW2)}, 0 offen", "t2"))
        if k + 1 < 16:
            for tt in range(4): fill.append(lambda tt=tt: rd_x(k + 1, tt))
            def w0():
                a.vmwait(f"w1s{k+1}")
                if k == 3: flag(a, 96, 184, "fx")
                rd_w(k + 1, 0, 0); rd_w(k + 1, 0, 1)
            fill.append(w0)
            fill.append(lambda: (rd_w(k + 1, 1, 0), rd_w(k + 1, 1, 1)))
            fill.append(lambda: (rd_w(k + 1, 2, 0), rd_w(k + 1, 2, 1)))
        a.lgwait(f"f{k}")
        m = 0
        for u in range(3):
            A = AB + 12*(k % 2) + 4*u
            for tt in range(5):
                if tt < 4:
                    c = ACC + 16*u + 4*tt; B = BB + 16*(k % 2) + 4*tt
                else:
                    c = CSM + 4*u; B = ONES
                a(f"v_mfma_f32_16x16x32_bf16 {vr(c)}, {vr(A)}, {vr(B)}, {vr(c) if k else 0}")
                if fill: fill.pop(0)()
        while fill: fill.pop(0)()
    a.stamp()
    MM, RD, NR = 184, 188, 192
    UD = 224
    a(f"""v_lshlrev_b32 v40, 2, v32
    v_add_u32 v40, {STAT}, v40""")
    for tt in range(4):
        a.lg(f"ds_read_b32 v{MM+tt}, v40 offset:{64*tt}", "ep")
        a.lg(f"ds_read_b32 v{RD+tt}, v40 offset:{256+64*tt}", "ep")
    a(f"""v_and_b32 v41, 31, v1
    v_lshlrev_b32 v41, 10, v41
    v_lshrrev_b32 v42, 5, v1
    v_lshl_add_u32 v41, v42, 4, v41
    s_lshl_b32 s64, s{RB2}, 16
    s_and_b32 s65, s{WV}, 1
    s_lshl_b32 s65, s65, 15
    s_add_u32 s64, s64, s65
    s_lshl_b32 s65, s{CB2}, 7
    s_add_u32 s64, s64, s65
    s_lshr_b32 s65, s{WV}, 1
    s_lshl_b32 s65, s65, 6
    s_add_u32 s64, s64, s65
    v_add_u32 v29, s64, v41""")
    a(f"""s_cmp_ge_u32 s{WV}, 2
    s_cbranch_scc1 L_nou""")
    poll(a, 24, 22, "s_mov_b64 exec, 0xffffffff", "x", first_issued=True)
    a(f"""s_lshl_b32 s64, s{CW}, 1
    s_add_u32 s64, s64, s{WV}
    s_lshl_b32 s64, s64, 12
    s_add_u32 s64, s64, {WS_XNT}""")
    for i in range(4):
        a(f"buffer_load_dwordx4 {vr(UD+4*i)}, v7, {sr(SWS)}, s64 offen offset:{1024*i} sc1")
    a("L_nou:")
    a.vm(f"buffer_load_dwordx4 v[8:11], v29, {sr(SX)}, 0 offen", "xf")
    a.vm(f"buffer_load_dwordx4 v[12:15], v29, {sr(SX)}, 0 offen offset:32", "xf")
    a.stamp()
    a(f"""s_mul_i32 s64, s{RB1}, {HRB}
    s_lshl_b32 s65, s98, 11
    s_add_u32 s64, s64, s65
    s_add_u32 s64, s64, {WS_H}
    v_add_u32 v30, s64, v7
    s_mov_b32 s64, {L2E}""")
    a.lgwait("ep")
    for tt in range(4):
        a(f"v_mul_f32_e64 v{NR+tt}, -v{RD+tt}, s64")
    for u in range(3):
        a(f"""s_cmp_gt_u32 s99, {u}
        s_cselect_b32 s65, {u*2048}, {OOB}""")
        for t32 in range(2):
            P = 216 + 4*t32
            for th in range(2):
                tt = 2*t32 + th
                (mo, ms), (ro, rs), (no, ns) = bc(MM+tt), bc(RD+tt), bc(NR+tt)
                for pr in range(2):
                    c = ACC + 16*u + 4*tt + 2*pr; t = 196 + 4*pr + 8*(tt % 2)
                    a(f"""v_pk_fma_f32 {vr(c,2)}, {vr(CSM+4*u+2*pr,2)}, {mo}, {vr(c,2)} op_sel:[0,{ms},0] op_sel_hi:[1,{ms},1] neg_lo:[0,1,0] neg_hi:[0,1,0]
                    v_pk_mul_f32 {vr(t,2)}, {vr(c,2)}, {no} op_sel:[0,{ns}] op_sel_hi:[1,{ns}]
                    v_pk_mul_f32 {vr(c,2)}, {vr(c,2)}, {ro} op_sel:[0,{rs}] op_sel_hi:[1,{rs}]
                    v_exp_f32 v{t}, v{t}
                    v_exp_f32 v{t+1}, v{t+1}""")
                for pr in range(2):
                    t = 196 + 4*pr + 8*(tt % 2)
                    a(f"""v_pk_add_f32 {vr(t,2)}, {vr(t,2)}, 1.0 op_sel_hi:[1,0]
                    v_rcp_f32 v{t}, v{t}
                    v_rcp_f32 v{t+1}, v{t+1}""")
                for pr in range(2):
                    c = ACC + 16*u + 4*tt + 2*pr; t = 196 + 4*pr + 8*(tt % 2)
                    a(f"""v_pk_mul_f32 {vr(c,2)}, {vr(c,2)}, {vr(t,2)}
                    v_cvt_pk_bf16_f32 v{P+2*th+pr}, v{c}, v{c+1}""")
            a(f"""v_permlane16_swap_b32 v{P}, v{P+2}
            v_permlane16_swap_b32 v{P+1}, v{P+3}""")
            a.vm(f"buffer_store_dwordx4 {vr(P)}, v30, {sr(SWS)}, s65 offen offset:{1024*t32} sc1", "hst")
        if u == 0:
            a(f"""s_cmp_ge_u32 s{WV}, 2
            s_cbranch_scc1 L_nou2
            s_mul_i32 s66, s{WV}, {USZ}
            s_add_u32 s66, s66, {U0}
            v_add_u32 v40, s66, v7
            v_mov_b32 v212, 0
            v_mov_b32 v213, 0
            v_mov_b32 v214, 0
            v_mov_b32 v215, 0
            s_mov_b64 exec, 0x3fffffff
            ds_write_b128 v40, v[212:215]
            s_mov_b64 exec, -1
            s_waitcnt vmcnt(4)""")
            for i in range(4):
                a(f"ds_write_b128 v40, {vr(UD+4*i)} offset:{480+1024*i}")
            a("L_nou2:")
    a.stamp()
    if stop == 4:
        a.vm0(); return finish(a)
    a.barrier()
    a(f"""v_lshrrev_b32 v40, 3, v1
    v_and_b32 v41, 7, v1
    v_and_b32 v42, 2, v40
    v_lshlrev_b32 v42, 1, v42
    v_xor_b32 v41, v41, v42
    v_lshlrev_b32 v40, 10, v40
    v_lshl_add_u32 v40, v41, 4, v40
    s_mul_i32 s64, s{WV}, {352*1024}
    s_lshl_b32 s65, s{CB2}, 7
    s_add_u32 s64, s64, s65
    v_add_u32 v4, s64, v40
    s_mul_i32 s101, s{WV}, {W2SZ}
    s_add_u32 s101, s101, {W2ST}""")
    def w2_dma(step, h):
        a(f"s_add_u32 m0, s101, {(step % 14)*2048 + 1024*h}")
        a(f"s_mov_b32 s66, {step*16384 + 8192*h}")
        a.vm(f"buffer_load_dwordx4 v4, {sr(SW2)}, s66 offen lds", "w2a" if step < 14 else "w2b")
    for st in range(14):
        w2_dma(st, 0); w2_dma(st, 1)
    KA = [16, 17, 18, 19]; UB = 20
    a(f"""v_lshlrev_b32 v40, 3, v33
    v_sub_u32 v40, v40, v32
    v_add_u32 v40, 2032, v40
    v_lshrrev_b32 v40, 1, v40
    v_lshlrev_b32 v40, 2, v40
    v_and_b32 v41, 1, v1
    v_mul_u32_u24 v41, {OOFF}, v41
    v_sub_u32 v40, v40, v41
    s_lshr_b32 s64, s{WV}, 1
    s_mul_i32 s65, s64, 8704
    s_and_b32 s66, s{WV}, 1
    s_lshl_b32 s67, s66, 8
    s_sub_u32 s65, s65, s67
    s_add_u32 s65, s65, {OOFF - 192 - 512}
    v_add_u32 v{KA[0]}, s65, v40
    v_subrev_u32 v{KA[1]}, 1024, v{KA[0]}
    v_subrev_u32 v{KA[2]}, 2048, v{KA[0]}
    v_subrev_u32 v{KA[3]}, 3072, v{KA[0]}
    s_mul_i32 s65, s64, {USZ}
    s_add_u32 s65, s65, {U0 + 256}
    s_sub_u32 s65, s65, s67
    v_lshlrev_b32 v40, 5, v32
    v_lshl_add_u32 v40, v33, 4, v40
    v_add_u32 v{UB}, s65, v40""")
    a(f"""v_lshrrev_b32 v40, 1, v33
    v_lshlrev_b32 v40, 3, v40
    v_lshrrev_b32 v41, 2, v32
    v_add_u32 v40, v40, v41
    v_lshlrev_b32 v40, 7, v40
    v_and_b32 v42, 1, v33
    v_lshl_add_u32 v40, v42, 5, v40
    v_lshl_add_u32 v40, v36, 3, v40
    v_add_u32 v40, s101, v40
    v_and_b32 v41, 2, v41
    v_lshl_add_u32 v5, v41, 5, v40
    v_xor_b32 v41, 2, v41
    v_lshl_add_u32 v6, v41, 5, v40
    v_mov_b32 v21, v32
    v_mov_b32 v22, v33""")
    CA, FA, FB = 32, 64, 128
    def rdA(g, i, h):
        b = FA + 32*(g % 2) + 4*i + 2*h
        o = (128 if i % 2 == 0 else 0) + 16*(3 - g) + 2*h
        a.lg(f"ds_read2_b32 {vr(b,2)}, v{KA[i//2]} offset0:{o} offset1:{o+1}", f"c{g}_{i}")
    def rdB(g, d):
        b = FB + 32*(g % 2) + 4*d
        a.lg(f"ds_read_b128 {vr(b)}, v{UB} offset:{64*(3-g) + 512*d}", f"c{g}_{d}")
    def rd_w2(step, dm, h):
        b = 8*step + 4*dm + 2*h
        a.lg(f"ds_read_b64_tr_b16 {ar(b,2)}, v{5+dm} offset:{(step % 14)*2048 + 512*h}", f"w2r{step}")
    for i in range(8):
        rdA(0, i, 0); rdA(0, i, 1); rdB(0, i)
    order = sorted([(i, d) for i in range(8) for d in range(8 - i)], key=lambda x: (max(x), x[0] + x[1]))
    for g in range(4):
        fill = []
        if g + 1 < 4:
            for i in range(8):
                fill.append(lambda i=i: rdA(g + 1, i, 0)); fill.append(lambda i=i: rdA(g + 1, i, 1)); fill.append(lambda i=i: rdB(g + 1, i))
        if g == 3:
            for st in range(14):
                for dm in range(2):
                    fill.append(lambda st=st, dm=dm: (rd_w2(st, dm, 0), rd_w2(st, dm, 1)))
        if g == 2:
            a.vmwait("hst"); flag(a, 97, 240, "fh")
            a.stamp()
        if g == 3:
            a.vmwait("w2a")
        seen = set(); lastmax = -1
        for (i, d) in order:
            c = i + d
            if max(i, d) != lastmax:
                lastmax = max(i, d); a.lgwait(f"c{g}_{lastmax}")
            first = (g == 0 and c not in seen); seen.add(c)
            a(f"v_mfma_f32_16x16x32_bf16 {vr(CA+4*c)}, {vr(FA+32*(g%2)+4*i)}, {vr(FB+32*(g%2)+4*d)}, {0 if first else vr(CA+4*c)}")
            if fill and (g > 0 or lastmax >= 2): fill.pop(0)()
        while fill: fill.pop(0)()
    a.lg0()
    for st in range(14, 22):
        w2_dma(st, 0); w2_dma(st, 1)
    a.stamp()
    a(f"""s_lshl_b32 s64, s{WV}, 12
    s_add_u32 s64, s64, {CS}
    s_xor_b32 s65, s{WV}, 1
    s_lshl_b32 s65, s65, 12
    s_add_u32 s65, s65, {CS}
    v_add_u32 v23, s64, v7
    v_add_u32 v24, s65, v7
    s_bitcmp1_b32 s{WV}, 0
    s_cbranch_scc1 L_codd""")
    for i in range(4): a(f"ds_write_b128 v23, {vr(CA+16+4*i)} offset:{1024*i}")
    a("s_branch L_cjoin")
    a("L_codd:")
    a("s_nop 7")
    for i in range(4): a(f"ds_write_b128 v23, {vr(CA+4*i)} offset:{1024*i}")
    a("s_nop 1")
    for i in range(8): a(f"v_pk_mul_f32 {vr(CA+2*i,2)}, {vr(CA+16+2*i,2)}, 1.0 op_sel_hi:[1,0]")
    a("L_cjoin:")
    masks = []
    for w in range(4):
        lo, hi = 22*w, min(22*w + 22, 86); m = 0
        for cb in range(8):
            u0, sz = units(cb)
            for wp in range(4):
                s0, s1 = u0 + 3*wp, u0 + min(3*wp + 3, sz)
                if s0 < hi and s1 > lo: m |= 1 << (cb*4 + wp)
        masks.append(m)
    a(f"""s_lshl_b32 s64, s{RB2}, 8
    s_add_u32 s64, s64, {WS_FH}
    v_lshlrev_b32 v25, 3, v1
    v_add_u32 v25, s64, v25
    s_mov_b32 s98, {masks[0]}
    s_cmp_eq_u32 s{WV}, 1
    s_cselect_b32 s98, {masks[1]}, s98
    s_cmp_eq_u32 s{WV}, 2
    s_cselect_b32 s98, {masks[2]}, s98
    s_cmp_eq_u32 s{WV}, 3
    s_cselect_b32 s98, {masks[3]}, s98
    s_mov_b32 s99, 0""")
    a.vm(f"buffer_load_dwordx2 v[26:27], v25, {sr(SWS)}, 0 offen sc1", "pfh")
    a(f"""s_lshr_b32 s64, s{WV}, 1
    s_mul_i32 s65, s64, {USZ}
    s_and_b32 s66, s{WV}, 1
    s_lshl_b32 s67, s66, 11
    s_add_u32 s65, s65, s67
    s_add_u32 s65, s65, {U0 + 480}
    v_lshlrev_b32 v28, 5, v21
    v_lshl_add_u32 v28, v22, 3, v28
    v_add_u32 v28, s65, v28""")
    a.barrier()
    for i in range(4): a.lg(f"ds_read_b128 {vr(240+4*i)}, v24 offset:{1024*i}", f"cr{i}")
    for i in range(4): a.lg(f"ds_read_b64 {vr(48+2*i,2)}, v28 offset:{512*i}", "cu")
    poll(a, 25, 26, "s_mov_b64 exec, s[98:99]", "h", first_issued=True); a.vmq = []
    a.stamp()
    HF = 64
    hl = [0]
    a(f"s_mul_i32 s100, s{WV}, {22*2048}")
    def h_load():
        i = hl[0]; hl[0] += 1
        if i % 4 == 0 and i: a("s_add_u32 s100, s100, 4096")
        a.vm(f"buffer_load_dwordx4 {vr(HF+4*i)}, v7, {sr(SH)}, s100 offen offset:{1024*(i%4)} sc1", f"h{i//2}")
    for i in range(16): h_load()
    a(f"""s_or_b32 s64, s2, s{WV}
    s_cmp_lg_u32 s64, 0
    s_cselect_b32 s64, {OOB}, {WS_EP}
    v_mov_b32 v26, s{TAG}
    v_mov_b32 v27, s64
    s_mov_b64 exec, 1""")
    a.vm(f"buffer_store_dword v26, v27, {sr(SWS)}, 0 offen sc1", "ep")
    a("s_mov_b64 exec, -1")
    a(f"""s_lshl_b32 s64, s{CW}, 1
    s_lshr_b32 s65, s{WV}, 1
    s_add_u32 s64, s64, s65
    s_lshl_b32 s64, s64, 12
    s_add_u32 s64, s64, s67
    s_add_u32 s64, s64, {WS_ST}
    v_and_b32 v23, 1, v22
    v_lshlrev_b32 v23, 9, v23
    v_lshl_add_u32 v23, v21, 5, v23
    v_lshrrev_b32 v24, 1, v22
    v_lshl_add_u32 v23, v24, 4, v23
    v_add_u32 v23, s64, v23
    v_mov_b32 v24, s31""")
    (do, ds_) = bc(24)
    for ci in range(4):
        a.lgwait(f"cr{ci}")
        if ci == 0: a.lgwait("cu")
        for pr in range(2):
            y = CA + 4*ci + 2*pr; uu = 48 + 2*ci + pr; t = 56 + 2*pr; o = 60 + 2*(ci % 2) + pr
            a(f"""v_pk_add_f32 {vr(y,2)}, {vr(y,2)}, {vr(240+4*ci+2*pr,2)}
            v_lshlrev_b32 v{t}, 16, v{uu}
            v_and_b32 v{t+1}, 0xffff0000, v{uu}
            v_cvt_pk_bf16_f32 v{y}, v{y}, v{y+1}
            v_pk_mul_f32 {vr(t,2)}, {vr(t,2)}, {do} op_sel:[0,{ds_}] op_sel_hi:[1,{ds_}]
            v_and_b32 v{y+1}, 0xffff0000, v{y}
            v_lshlrev_b32 v{y}, 16, v{y}
            v_cvt_pk_bf16_f32 v{uu}, v{t}, v{t+1}
            v_lshlrev_b32 v{t}, 16, v{uu}
            v_and_b32 v{t+1}, 0xffff0000, v{uu}
            v_pk_add_f32 {vr(y,2)}, {vr(y,2)}, {vr(t,2)}
            v_cvt_pk_bf16_f32 v{o}, v{y}, v{y+1}""")
        if ci % 2 == 1:
            a(f"""v_permlane16_swap_b32 v60, v62
            v_permlane16_swap_b32 v61, v63""")
            a.vm(f"buffer_store_dwordx4 v[60:63], v23, {sr(SWS)}, 0 offen offset:{1024*(ci//2)} sc1", "sst")
    while hl[0] < 44: h_load()
    if stop == 5:
        a.vm0(); return finish(a)
    a(f"""s_lshl_b32 s96, s{CB1}, 1
    s_and_b32 s64, s{WV}, 1
    s_add_u32 s96, s96, s64
    s_lshl_b32 s96, s96, 6
    s_lshl_b32 s64, s{RB1}, 1
    s_add_u32 s96, s96, s64
    s_lshr_b32 s64, s{WV}, 1
    s_add_u32 s96, s96, s64
    s_lshl_b32 s96, s96, 3
    s_add_u32 s96, s96, {WS_FS}
    s_lshl_b32 s64, s{CB2}, 1
    s_lshr_b32 s65, s{RB2}, 4
    s_add_u32 s64, s64, s65
    s_lshl_b32 s64, s64, 9
    s_lshl_b32 s65, s{WV}, 7
    s_add_u32 s64, s64, s65
    s_add_u32 s64, s64, {WS_FS}
    v_lshlrev_b32 v25, 3, v1
    v_add_u32 v25, s64, v25
    s_lshl_b32 s64, s{CB2}, 6
    s_lshl_b32 s65, s{WV}, 4
    s_add_u32 s64, s64, s65
    s_lshl_b32 s64, s64, 12
    s_lshl_b32 s65, s{RB2}, 7
    s_add_u32 s64, s64, s65
    s_add_u32 s64, s64, {WS_ST}
    v_lshrrev_b32 v26, 3, v1
    v_lshlrev_b32 v26, 12, v26
    v_and_b32 v27, 7, v1
    v_lshl_add_u32 v26, v27, 4, v26
    v_add_u32 v26, s64, v26""")
    GA = 176
    for st in range(22):
        fill = []
        if st < 8:
            fill = [lambda: (rd_w2(14 + st, 0, 0), rd_w2(14 + st, 0, 1)), lambda: (rd_w2(14 + st, 1, 0), rd_w2(14 + st, 1, 1))]
        a.vmwait(f"h{st}")
        if st == 8: flag(a, 96, 16, "fs")
        if st >= 14: a.lgwait(f"w2r{st}")
        for dm in range(2):
            for tn in range(2):
                c = GA + 32*dm + 16*tn
                a(f"v_mfma_f32_32x32x16_bf16 {ar(c,16)}, {ar(8*st+4*dm)}, {vr(HF+8*st+4*tn)}, {ar(c,16) if st else 0}")
                if fill: fill.pop(0)()
        if st == 18:
            a.vm(f"buffer_load_dwordx2 v[32:33], v25, {sr(SWS)}, 0 offen sc1", "pfs")
    a.stamp()
    poll(a, 25, 32, "s_mov_b64 exec, 0xffff", "s", first_issued=True); a.vmq = []
    a(f"s_mov_b32 s64, 32768")
    a.vm(f"buffer_load_dwordx4 v[112:115], v26, {sr(SWS)}, 0 offen sc1", "sl")
    a.vm(f"buffer_load_dwordx4 v[116:119], v26, {sr(SWS)}, s64 offen sc1", "sl")
    a(f"v_add_u32 v23, s101, v7")
    for w in range(4):
        lbl = f"L_q{w}"
        a(f"""s_cmp_eq_u32 s{WV}, {w}
        s_cbranch_scc1 {lbl}a
        s_xor_b32 s64, s{WV}, {w}
        s_lshl_b32 s64, s64, 12
        s_sub_u32 s64, s64, 4096
        v_add_u32 v24, s64, v23""")
        for i in range(4): a(f"ds_write_b128 v24, {ar(GA+16*w+4*i)} offset:{1024*i}")
        a(f"s_branch {lbl}b")
        a(f"{lbl}a:")
        if w == 0: a("s_nop 7")
        for i in range(16): a(f"v_accvgpr_read_b32 v{32+i}, a{GA+16*w+i}")
        a(f"{lbl}b:")
    a.vmwait("sl")
    a.lg(f"ds_write_b128 v23, v[112:115] offset:12288", "x")
    a.lg(f"ds_write_b128 v23, v[116:119] offset:13312", "x")
    for k in range(1, 4):
        a(f"""s_xor_b32 s64, s{WV}, {k}
        s_mul_i32 s64, s64, {W2SZ}
        s_add_u32 s64, s64, {W2ST + (k-1)*4096}
        v_add_u32 v{16+k}, s64, v7""")
    a(f"""v_lshrrev_b32 v24, 1, v22
    v_lshlrev_b32 v24, 2, v24
    v_lshrrev_b32 v27, 2, v21
    v_add_u32 v24, v24, v27
    v_lshlrev_b32 v24, 7, v24
    v_and_b32 v27, 1, v22
    v_lshl_add_u32 v24, v27, 5, v24
    v_and_b32 v27, 3, v1
    v_lshl_add_u32 v24, v27, 3, v24
    s_lshr_b32 s64, s{WV}, 1
    s_mul_i32 s64, s64, {2*W2SZ}
    s_and_b32 s65, s{WV}, 1
    s_lshl_b32 s65, s65, 6
    s_add_u32 s64, s64, s65
    s_add_u32 s64, s64, {W2ST + 12288}
    v_add_u32 v20, s64, v24
    v_permlane32_swap_b32 v8, v10
    v_permlane32_swap_b32 v9, v11
    v_permlane32_swap_b32 v12, v14
    v_permlane32_swap_b32 v13, v15
    s_mov_b32 s64, {L2E | 0x80000000}""")
    a.barrier()
    for g4 in range(4):
        for k in range(1, 4):
            a.lg(f"ds_read_b128 {vr(64+16*(k-1)+4*g4)}, v{16+k} offset:{1024*g4}", f"r{g4}")
        a.lg(f"ds_read_b64_tr_b16 {vr(112+2*g4,2)}, v20 offset:{(g4//2)*W2SZ + (g4%2)*1024}", f"r{g4}")
    for g4 in range(4):
        a.lgwait(f"r{g4}")
        for pr in range(2):
            o = 32 + 4*g4 + 2*pr; t = 120 + 8*pr
            p1, p2, p3 = 64 + 4*g4 + 2*pr, 80 + 4*g4 + 2*pr, 96 + 4*g4 + 2*pr
            a(f"""v_pk_add_f32 {vr(o,2)}, {vr(o,2)}, {vr(p1,2)}
            v_pk_add_f32 {vr(p2,2)}, {vr(p2,2)}, {vr(p3,2)}
            v_pk_add_f32 {vr(o,2)}, {vr(o,2)}, {vr(p2,2)}
            v_mul_f32 v{t}, s64, v{o}
            v_mul_f32 v{t+1}, s64, v{o+1}
            v_exp_f32 v{t}, v{t}
            v_exp_f32 v{t+1}, v{t+1}
            v_lshlrev_b32 v{t+2}, 16, v{112+2*g4+pr}
            v_and_b32 v{t+3}, 0xffff0000, v{112+2*g4+pr}
            v_pk_add_f32 {vr(t,2)}, {vr(t,2)}, 1.0 op_sel_hi:[1,0]
            v_lshlrev_b32 v{t+4}, 16, v{8+2*g4+pr}
            v_rcp_f32 v{t}, v{t}
            v_rcp_f32 v{t+1}, v{t+1}
            v_and_b32 v{t+5}, 0xffff0000, v{8+2*g4+pr}
            v_pk_mul_f32 {vr(o,2)}, {vr(o,2)}, {vr(t+2,2)}
            v_pk_fma_f32 {vr(o,2)}, {vr(o,2)}, {vr(t,2)}, {vr(t+4,2)}
            v_cvt_pk_bf16_f32 v{136+2*g4+pr}, v{o}, v{o+1}""")
        if g4 % 2 == 1:
            b = 136 + 2*(g4 - 1)
            a(f"""v_permlane32_swap_b32 v{b}, v{b+2}
            v_permlane32_swap_b32 v{b+1}, v{b+3}""")
            a.vm(f"buffer_store_dwordx4 {vr(b)}, v29, {sr(SOUT)}, 0 offen offset:{32*(g4//2)}", "out")
    return finish(a)

def finish(a):
    if a.stamps:
        a.vm0()
        a.stamp()
        n = a.nst
        a(f"""v_cmp_eq_u32 vcc, 0, v0
        s_and_saveexec_b64 s[68:69], vcc
        s_cbranch_execz L_end
        s_lshl_b32 s67, s2, 7
        s_add_u32 s67, s67, {STAMP_OFF}
        v_mov_b32 v1, s67""")
        for i in range(n):
            a(f"""v_mov_b32 v2, s{70+2*i}
            v_mov_b32 v3, s{71+2*i}
            buffer_store_dwordx2 v[2:3], v1, {sr(SWS)}, 0 offen offset:{8*i}
            s_nop 1""")
    a("L_end:")
    lines, n = hz.fix(a.lines)
    return "\n".join(lines) + "\n", n, a.nst

HEADER = open("recurrent_scan__ssm_conv_s4d__dense_activation_silu__prompt.s.ref").read().split("; Override")[0]
def wrap(body):
    return f"""{HEADER}; @launch grid=(256,1,1) block=(256,1,1) lds={LDS_TOTAL}
.amdgcn_target "amdgcn-amd-amdhsa--gfx950"
.text
.globl {KN}
.p2align 8
.type {KN},@function
{KN}:
{body}    s_endpgm
.section .rodata,"a"
.p2align 6
.amdhsa_kernel {KN}
  .amdhsa_next_free_vgpr 496
  .amdhsa_next_free_sgpr 102
  .amdhsa_accum_offset 256
  .amdhsa_group_segment_fixed_size 0
  .amdhsa_kernarg_size 104
  .amdhsa_user_sgpr_count 2
  .amdhsa_user_sgpr_kernarg_segment_ptr 1
  .amdhsa_system_sgpr_workgroup_id_x 1
.end_amdhsa_kernel
"""
if __name__ == "__main__":
    import argparse
    ap = argparse.ArgumentParser()
    ap.add_argument("out"); ap.add_argument("--stop", type=int, default=99); ap.add_argument("--stamps", action="store_true")
    ap.add_argument("--map1", type=int, default=1); ap.add_argument("--touch1", type=int, default=1); ap.add_argument("--touch2", type=int, default=1)
    x = ap.parse_args()
    body, n, nst = gen(x.stop, x.stamps, x.map1, x.touch1, x.touch2)
    open(x.out, "w").write(wrap(body))
    print(f"wrote {x.out}: {body.count(chr(10))} lines, {n} nops inserted, {nst} stamps")
```

```python
import sys
from asmlib import Asm, KN, STAMP_OFF
import hz

WS_XNT = 0x000000
WS_ST  = 0x200000
WS_H   = 0x400000
HRB    = 86 * 2048
WS_FX  = 0xA00000
WS_FH  = 0xA02000
WS_FS  = 0xA04000
WS_EP  = 0xA10000
WS_DBG = 0xB00000
KG = [0, 17408, 8704, 26112]
LX = 34816; XS = 1056
RING = 102400; RSL = 3072; RST = 4
STAT = 151552
U0 = 152064; USZ = 4608
CS = 17408
W2ST = 33792; W2SZ = 28672
LDS_TOTAL = 161280
OOFF = 4160
OOB = 0x40000000
L2E = 0x3FB8AA3B; L2E_LO = 0x32A57060; LN2 = 0x3F317218

SX, SW1, SW2, SOUT, SWS, SH = 32, 36, 40, 44, 48, 52
RB1, CB1, RB2, CB2, CW, WV, TAG, NTAG = 56, 57, 58, 59, 60, 61, 62, 63

CLK = "s_memrealtime"
DBGSPAN = False
class G(Asm):
    def __init__(self, stamps=False):
        super().__init__()
        self.vmq = []; self.lgq = []; self.stamps = stamps; self.nst = 0
    def vm(self, text, tag):
        self(text); self.vmq.append(tag); assert len(self.vmq) <= 63, "vmcnt overflow"
    def vmwait(self, tag):
        if tag not in self.vmq: return
        i = len(self.vmq) - 1 - self.vmq[::-1].index(tag)
        n = len(self.vmq) - 1 - i
        self(f"s_waitcnt vmcnt({n})"); self.vmq = self.vmq[i+1:]
    def vm0(self):
        self("s_waitcnt vmcnt(0)"); self.vmq = []
    def lg(self, text, tag):
        self(text); self.lgq.append(tag)
    def lgwait(self, tag):
        if tag not in self.lgq: return
        i = len(self.lgq) - 1 - self.lgq[::-1].index(tag)
        n = len(self.lgq) - 1 - i
        if n > 15: n = 15; i = len(self.lgq) - 1 - n
        self(f"s_waitcnt lgkmcnt({n})"); self.lgq = self.lgq[i+1:]
    def lg0(self):
        self("s_waitcnt lgkmcnt(0)"); self.lgq = []
    def barrier(self):
        self.lg0(); self("s_barrier")
    def stamp(self):
        if self.stamps:
            i = self.nst; self.nst += 1
            assert i < 14
            self(f"{CLK} s[{70+2*i}:{71+2*i}]"); self.lg0()

def vr(b, n=4): return f"v[{b}:{b+n-1}]"
def ar(b, n=4): return f"a[{b}:{b+n-1}]"
def sr(b, n=4): return f"s[{b}:{b+n-1}]"

def srd(a, d, b, nbytes):
    a(f"""s_mov_b32 s{d}, s{b}
    s_and_b32 s{d+1}, s{b+1}, 0xffff
    s_mov_b32 s{d+2}, {nbytes}
    s_mov_b32 s{d+3}, 0x00020000""")

def bf16r(a, d, s):
    a(f"v_cvt_pk_bf16_f32 v{d}, v{s}, v{s}")
    a(f"v_and_b32 v{d}, 0xffff0000, v{d}")

def expc(a, d, x, t0, t1):
    a(f"""v_mul_f32 v{t0}, s64, v{x}
    v_fma_f32 v{t1}, v{x}, s64, -v{t0}
    v_fmac_f32 v{t1}, s65, v{x}
    v_exp_f32 v{d}, v{t0}
    v_mul_f32 v{t1}, s66, v{t1}
    v_fmac_f32 v{d}, v{d}, v{t1}""")

def cmul(a, d, x, y):
    assert d != x
    a(f"v_pk_mul_f32 {vr(d,2)}, {vr(x,2)}, {vr(y,2)} op_sel:[0,0] op_sel_hi:[0,1]")
    a(f"v_pk_fma_f32 {vr(d,2)}, {vr(x,2)}, {vr(y,2)}, {vr(d,2)} op_sel:[1,1,0] op_sel_hi:[1,0,1] neg_lo:[0,1,0]")

def bc(reg):
    return (vr(reg & ~1, 2), reg & 1)

def poll(a, vaddr, vd, maskset, name, first_issued=False):
    lp = a.label("Lpoll" + name); dn = a.label("Lpd" + name)
    a(maskset)
    a("s_mov_b32 s3, 0x40000")
    if first_issued:
        ck = a.label("Lpc" + name)
        a(f"s_branch {ck}")
    a(f"{lp}:")
    a(f"buffer_load_dwordx2 {vr(vd,2)}, v{vaddr}, {sr(SWS)}, 0 offen sc1")
    if first_issued: a(f"{ck}:")
    a(f"""s_waitcnt vmcnt(0)
    v_cmp_ne_u32 vcc, s{TAG}, v{vd}
    v_cmp_ne_u32 s[68:69], s{NTAG}, v{vd+1}
    s_or_b64 vcc, vcc, s[68:69]
    s_cbranch_vccz {dn}
    s_sub_u32 s3, s3, 1
    s_cbranch_scc1 {dn}
    s_sleep 1
    s_branch {lp}
    {dn}:
    s_mov_b64 exec, -1""")

def flag(a, soff, vt, tag):
    a(f"""v_mov_b32 v{vt}, s{TAG}
    v_mov_b32 v{vt+1}, s{NTAG}
    v_mov_b32 v{vt+2}, s{soff}
    s_mov_b64 exec, 1""")
    a.vm(f"buffer_store_dwordx2 {vr(vt,2)}, v{vt+2}, {sr(SWS)}, 0 offen sc1", tag)
    a("s_mov_b64 exec, -1")

def units(cb):
    u0 = 11 * cb - (1 if cb == 7 else 0); sz = 11 if cb < 6 else 10
    return u0, sz

def dump_lds(a, off, nbytes, wsoff):
    a.barrier()
    a(f"""s_mul_i32 s64, s2, 0x28000
    s_add_u32 s64, s64, {WS_DBG + wsoff}
    v_lshlrev_b32 v250, 4, v0""")
    for i in range(0, nbytes, 4096):
        a(f"v_add_u32 v251, {off + i}, v250")
        a(f"ds_read_b128 v[252:255], v251")
        a("s_waitcnt lgkmcnt(0)")
        a(f"v_cmp_gt_u32 vcc, {nbytes - i}, v250")
        a("s_and_saveexec_b64 s[68:69], vcc")
        a(f"buffer_store_dwordx4 v[252:255], v250, {sr(SWS)}, s64 offen")
        a("s_waitcnt vmcnt(0)")
        a("s_mov_b64 exec, s[68:69]")
        a("s_add_u32 s64, s64, 4096")

def gen(stop=99, stamps=False, map1=1, touch1=True, touch2=True):
    a = G(stamps)
    if stamps: a(f"{CLK} s[70:71]"); a.nst = 1
    a(f"""s_cmp_ge_u32 s2, 256
    s_cbranch_scc1 L_end
    s_load_dwordx16 s[4:19], s[0:1], 0
    s_load_dwordx8 s[20:27], s[0:1], 64
    s_load_dwordx2 s[28:29], s[0:1], 96
    v_and_b32 v1, 63, v0
    v_lshrrev_b32 v2, 6, v0
    v_lshlrev_b32 v7, 4, v1
    v_readfirstlane_b32 s{WV}, v2
    s_and_b32 s64, s2, 7
    s_lshr_b32 s65, s2, 3
    s_and_b32 s66, s65, 3
    s_lshr_b32 s{CB2}, s65, 2
    s_lshl_b32 s{RB2}, s64, 2
    s_add_u32 s{RB2}, s{RB2}, s66""")
    if map1:
        a(f"""s_and_b32 s{CB1}, s64, 1
        s_lshl_b32 s{CB1}, s{CB1}, 2
        s_add_u32 s{CB1}, s{CB1}, s66
        s_lshr_b32 s{RB1}, s64, 1
        s_lshl_b32 s{RB1}, s{RB1}, 3
        s_add_u32 s{RB1}, s{RB1}, s{CB2}""")
    else:
        a(f"""s_mov_b32 s{CB1}, s{CB2}
        s_mov_b32 s{RB1}, s{RB2}""")
    a(f"""s_lshl_b32 s{CW}, s{CB1}, 5
    s_add_u32 s{CW}, s{CW}, s{RB1}""")
    a(f"""s_lshl_b32 s67, s{CW}, 9
    s_lshl_b32 s68, s{WV}, 7
    s_add_u32 s67, s67, s68
    v_lshlrev_b32 v20, 1, v1
    v_add_u32 v20, s67, v20""")
    a(f"""s_mul_i32 s98, s{CB1}, 11
    s_cmp_eq_u32 s{CB1}, 7
    s_cselect_b32 s67, 1, 0
    s_sub_u32 s98, s98, s67
    s_mul_i32 s67, s{WV}, 3
    s_add_u32 s98, s98, s67
    s_cmp_lt_u32 s{CB1}, 6
    s_cselect_b32 s99, 11, 10
    s_sub_u32 s99, s99, s67
    s_min_u32 s99, s99, 3
    s_lshl_b32 s67, s98, 5
    s_lshl_b32 s68, s99, 1""")
    for q in range(3):
        a(f"""v_add_u32 v8, {q*64}, v1
        v_mul_u32_u24 v9, 43691, v8
        v_lshrrev_b32 v9, 18, v9
        v_mul_u32_u24 v10, 6, v9
        v_sub_u32 v10, v8, v10
        v_and_b32 v11, 0x13, v9
        v_and_b32 v12, 4, v9
        v_lshl_or_b32 v11, v12, 1, v11
        v_and_b32 v12, 8, v9
        v_lshrrev_b32 v12, 1, v12
        v_or_b32 v11, v11, v12
        v_mul_u32_u24 v11, 2752, v11
        v_lshl_add_u32 v11, v10, 4, v11
        v_add_u32 v11, s67, v11
        v_mov_b32 v12, {OOB}
        v_cmp_gt_u32 vcc, s68, v10
        v_cndmask_b32 v{4+q}, v12, v11, vcc""")
    if map1:
        a(f"""v_lshrrev_b32 v8, 4, v0
        s_lshl_b32 s67, s65, 4
        v_add_u32 v8, s67, v8
        v_mul_u32_u24 v8, 2752, v8
        v_and_b32 v9, 15, v0
        v_lshl_add_u32 v8, v9, 7, v8
        s_and_b32 s67, s64, 1
        s_mul_i32 s67, s67, 1408
        v_add_u32 v8, s67, v8
        v_mov_b32 v12, {OOB}
        v_cmp_gt_u32 vcc, 12, v9
        v_cndmask_b32 v21, v12, v8, vcc""")
    else:
        a(f"""s_mul_i32 s67, s65, 44032
        v_lshlrev_b32 v21, 7, v0
        v_add_u32 v21, s67, v21""")
    a("s_mov_b32 s100, s65")
    a("s_waitcnt lgkmcnt(0)")
    a.vm("global_load_ushort v16, v20, s[6:7]", "par")
    a.vm("global_load_ushort v17, v20, s[8:9]", "par")
    a.vm("global_load_ushort v18, v20, s[10:11]", "par")
    a.vm("global_load_ushort v19, v20, s[12:13]", "par")
    srd(a, SX, 4, 2097152)
    a(f"""s_lshl_b32 s64, s{RB1}, 16
    s_lshl_b32 s65, s{WV}, 14
    s_add_u32 s64, s64, s65
    s_mul_i32 s65, s{WV}, {16*XS}
    s_add_u32 s65, s65, {LX}""")
    for r in range(16):
        a(f"s_add_u32 m0, s65, {r*XS}")
        a(f"s_add_u32 s66, s64, {r*1024}")
        a.vm(f"buffer_load_dwordx4 v7, {sr(SX)}, s66 offen lds", "x")
    srd(a, SW1, 20, 1409024)
    a(f"""s_lshl_b32 s66, s{CW}, 2
    s_load_dword s30, s[14:15], s66
    s_load_dword s31, s[16:17], s66
    s_add_u32 s64, s28, {WS_EP}
    s_addc_u32 s65, s29, 0
    s_load_dword s{TAG}, s[64:65], 0""")
    if touch1:
        a.vm(f"buffer_load_dword v22, v21, {sr(SW1)}, 0 offen", "t1")
        if not map1:
            a(f"""v_add_u32 v21, 32768, v21
            v_mov_b32 v12, {OOB}
            v_cmp_gt_u32 vcc, 88, v0
            v_cndmask_b32 v21, v12, v21, vcc""")
            a.vm(f"buffer_load_dword v23, v21, {sr(SW1)}, 0 offen", "t1")
    a(f"""s_mul_i32 s101, s{WV}, {RST*RSL}
    s_add_u32 s101, s101, {RING}""")
    def ring_dma(stage, q):
        a(f"s_add_u32 m0, s101, {(stage % RST)*RSL + q*1024}")
        a(f"s_mov_b32 s66, {stage*32*2752}")
        a.vm(f"buffer_load_dwordx4 v{4+q}, {sr(SW1)}, s66 offen lds", f"w1s{stage}")
    for st in range(RST):
        for q in range(3): ring_dma(st, q)
    srd(a, SW2, 22, 1409024)
    srd(a, SOUT, 24, 2097152)
    srd(a, SWS, 28, 268435456)
    a(f"""s_mul_i32 s66, s{RB2}, {HRB}
    s_add_u32 s66, s66, {WS_H}
    s_add_u32 s{SH}, s28, s66
    s_addc_u32 s{SH+1}, s29, 0
    s_and_b32 s{SH+1}, s{SH+1}, 0xffff
    s_mov_b32 s{SH+2}, {HRB}
    s_mov_b32 s{SH+3}, 0x00020000""")
    a.stamp()
    Z1, Z2, Z4, Z8, Z256, CC, C0, C1, Q0, Q1 = 32, 34, 36, 38, 40, 42, 44, 46, 48, 50
    PK = [52, 53, 54, 55]; VW, VRD = 56, 57; A2, BR, T0, T1, DT = 58, 59, 60, 61, 62
    EB, EA, KACC, KP = 64, 96, 128, 144
    a(f"""s_mov_b32 s64, {L2E}
    s_mov_b32 s65, {L2E_LO}
    s_mov_b32 s66, {LN2}""")
    a(f"""s_and_b32 s67, s{WV}, 1
    s_mul_i32 s67, s67, 17408
    s_lshr_b32 s68, s{WV}, 1
    s_mul_i32 s69, s68, 8704
    s_add_u32 s67, s67, s69
    v_lshlrev_b32 v{VW}, 2, v1
    v_add_u32 v{VW}, s67, v{VW}
    v_and_b32 v{T0}, 31, v1
    v_mul_u32_u24 v{T0}, 272, v{T0}
    v_lshrrev_b32 v{T1}, 5, v1
    v_lshl_add_u32 v{T0}, v{T1}, 4, v{T0}
    v_add_u32 v{VRD}, s67, v{T0}
    s_waitcnt lgkmcnt(0)
    s_add_u32 s{TAG}, s{TAG}, 1
    s_not_b32 s{NTAG}, s{TAG}
    s_lshl_b32 s68, s68, 4
    s_lshr_b32 s30, s30, s68
    s_lshl_b32 s30, s30, 16
    s_lshr_b32 s31, s31, s68
    s_lshl_b32 s31, s31, 16
    v_mov_b32 v{A2}, s30""")
    expc(a, DT, A2, T0, T1); bf16r(a, DT, DT)
    a.vmwait("par")
    a.stamp()
    a(f"""v_lshlrev_b32 v16, 16, v16
    v_lshlrev_b32 v17, 16, v17
    v_lshlrev_b32 v18, 16, v18
    v_lshlrev_b32 v19, 16, v19""")
    expc(a, A2, 16, T0, T1); bf16r(a, A2, A2)
    a(f"""v_mul_f32 v{A2}, v{A2}, v{DT}
    v_mul_f32 v{BR}, v17, v{DT}
    v_mul_f32 v{CC}, v18, v{DT}
    v_mul_f32 v{CC+1}, v19, v{DT}
    v_mul_f32_e64 v{A2}, -v{A2}, s64
    v_mul_f32 v{BR}, 0.15915494, v{BR}
    v_add_f32 v{CC}, v{CC}, v{CC}
    v_add_f32 v{CC+1}, v{CC+1}, v{CC+1}""")
    def zdirect(z, P):
        if P == 1:
            a(f"""v_exp_f32 v{T0}, v{A2}
            v_fract_f32 v{T1}, v{BR}""")
        else:
            a(f"""v_mul_f32 v{T0}, {float(P)}, v{A2}
            v_mul_f32 v{T1}, {float(P)}, v{BR}
            v_exp_f32 v{T0}, v{T0}
            v_fract_f32 v{T1}, v{T1}""")
        a(f"""v_cos_f32 v{z}, v{T1}
        v_sin_f32 v{z+1}, v{T1}
        v_pk_mul_f32 {vr(z,2)}, {vr(z,2)}, {vr(T0,2)} op_sel:[0,0] op_sel_hi:[1,0]""")
    zdirect(Z8, 8); zdirect(Z1, 1); zdirect(Z256, 256)
    pkc = [0]
    def emit(val, row, neg):
        p = PK[pkc[0] % 4]; pkc[0] += 1
        a(f"v_cvt_pk_bf16_f32 v{p}, v{val}, {'-' if neg else ''}v{val+1}")
        a.lg(f"ds_write_b32 v{VW}, v{p} offset:{row*272}", "kw")
    a(f"v_mov_b32 v{PK[3]}, 0x3f80")
    a.lg(f"ds_write_b32 v{VW}, v{PK[3]} offset:0", "kw")
    emit(Z8, 1, False)
    cur = Z8; pp = [C0, C1]
    for n in range(2, 32):
        d = pp[n % 2]; cmul(a, d, cur, Z8); emit(d, n, False); cur = d
        if n == 4: cmul(a, Z2, Z1, Z1)
        if n == 6: cmul(a, Z4, Z2, Z2)
    for s in range(8):
        a.lg(f"ds_read_b128 {vr(EB+4*s)}, v{VRD} offset:{32*s}", "eb")
    def mrow(hh, r): return (r & 3) + 8 * (r >> 2) + 4 * hh
    emit(CC, mrow(0, 7), True)
    cur = CC
    for i in range(1, 9):
        d = pp[i % 2]; cmul(a, d, cur, Z1); emit(d, mrow(0, 7 + i), True); cur = d
    qq = [Q0, Q1]
    cmul(a, Q0, CC, Z256); emit(Q0, mrow(1, 7), True)
    cur = Q0
    for i in range(1, 5):
        d = pp[i % 2]; cmul(a, d, cur, Z2); emit(d, mrow(1, 7 + i), True); cur = d
    q = Q0
    for hh in range(2):
        qn = Q1 if q == Q0 else Q0
        cmul(a, qn, q, Z256); q = qn; emit(q, mrow(hh, 4), True)
        cmul(a, C0, q, Z4); emit(C0, mrow(hh, 5), True)
        cmul(a, C1, q, Z8); emit(C1, mrow(hh, 6), True)
    for z in range(4):
        qn = Q1 if q == Q0 else Q0
        cmul(a, qn, q, Z256); q = qn
        hh, r = z >> 1, 2 * (z & 1)
        emit(q, mrow(hh, r), True)
        d = pp[z % 2]; cmul(a, d, q, Z8); emit(d, mrow(hh, r + 1), True)
    for s in range(8):
        a.lg(f"ds_read_b128 {vr(EA+4*s)}, v{VRD} offset:{32*s}", f"ea{s}")
    for s in range(8):
        a.lgwait(f"ea{s}")
        a(f"v_mfma_f32_32x32x16_bf16 {vr(KACC,16)}, {vr(EA+4*s)}, {vr(EB+4*s)}, {vr(KACC,16) if s else 0}")
    a(f"""s_lshr_b32 s68, s{WV}, 1
    s_mul_i32 s64, s68, {USZ}
    s_add_u32 s64, s64, {U0}
    s_mul_i32 s65, s68, 8704
    s_add_u32 s66, s65, 17408
    s_bitcmp1_b32 s{WV}, 0
    s_cselect_b32 s67, s66, s64
    s_cselect_b32 s69, s64, s66
    v_add_u32 v{T0}, s67, v7
    v_add_u32 v{T1}, s69, v7""")
    for i in range(4):
        a.lg(f"ds_write_b128 v{T0}, {vr(KACC+4*i)} offset:{1024*i}", "kx")
    a.barrier()
    for i in range(4):
        a.lg(f"ds_read_b128 {vr(KP+4*i)}, v{T1} offset:{1024*i}", f"kp{i}")
    AD3, AD2 = 58, 59
    a(f"""v_and_b32 v{T0}, 31, v1
    v_lshlrev_b32 v{T0}, 4, v{T0}
    v_lshrrev_b32 v{T1}, 5, v1
    s_add_u32 s64, s65, 1520
    s_add_u32 s66, s65, 3056
    v_lshl_add_u32 v{AD3}, v{T1}, 10, v{T0}
    v_sub_u32 v{AD3}, s64, v{AD3}
    v_lshl_add_u32 v{AD2}, v{T1}, 9, v{T0}
    v_sub_u32 v{AD2}, s66, v{AD2}
    v_and_b32 v{T0}, 1, v1
    v_cmp_eq_u32 vcc, 1, v{T0}""")
    for i in range(4):
        a.lgwait(f"kp{i}")
        a(f"v_pk_add_f32 {vr(KACC+4*i,2)}, {vr(KACC+4*i,2)}, {vr(KP+4*i,2)}")
        a(f"v_pk_add_f32 {vr(KACC+4*i+2,2)}, {vr(KACC+4*i+2,2)}, {vr(KP+4*i+2,2)}")
    def blk(E, O, addr, off, o0):
        for i, (lo, hi) in enumerate(E): a(f"v_cvt_pk_bf16_f32 v{o0+i}, v{lo}, v{hi}")
        a.lg(f"ds_write_b128 v{addr}, {vr(o0)} offset:{off}", "kb")
        for i, (lo, hi) in enumerate(O): a(f"v_cvt_pk_bf16_f32 v{o0+4+i}, v{lo}, v{hi}")
        a.lg(f"ds_write_b128 v{addr}, {vr(o0+4)} offset:{off+OOFF}", "kb")
    V = lambda r: KACC + r
    a(f"""s_bitcmp1_b32 s{WV}, 0
    s_cbranch_scc1 L_kodd""")
    save_lg = list(a.lgq)
    for ps, off in ((0, 512), (2, 0)):
        V0, V1 = V(ps), V(ps + 1); W = 60 + ps // 2
        a(f"v_cndmask_b32 v{W}, v{V0}, v{V1}, vcc")
        blk([(V1, V1), (V1, W), (V0, V0), (V0, V0)], [(V1, V1), (V1, V1), (W, V0), (V0, V0)], AD3, off, 160 + 4 * ps)
    a("s_branch L_kdone")
    a("L_kodd:")
    a("s_nop 1")
    A_, B_, C_ = V(4), V(5), V(6)
    blk([(C_, C_), (B_, B_), (B_, A_), (A_, A_)], [(C_, C_), (C_, B_), (B_, B_), (A_, A_)], AD2, 0, 160)
    a("s_mov_b32 exec_lo, 0")
    for d, s in ((15, 11), (14, 11), (13, 10), (12, 9), (11, 9), (10, 9), (9, 8), (8, 7)):
        a(f"v_mov_b32 v{V(d)}, v{V(s)}")
    a("s_mov_b32 exec_lo, -1")
    K = lambda i: V(7 + i)
    blk([(K(7), K(6)), (K(5), K(4)), (K(3), K(2)), (K(1), K(0))], [(K(8), K(7)), (K(6), K(5)), (K(4), K(3)), (K(2), K(1))], AD2, 1024, 168)
    a(f"""v_mov_b32 v176, 0
    v_mov_b32 v177, 0
    v_mov_b32 v178, 0
    v_mov_b32 v179, 0
    v_cvt_pk_bf16_f32 v180, v{K(0)}, v176
    v_mov_b32 v181, 0
    v_mov_b32 v182, 0
    v_mov_b32 v183, 0
    v_mov_b32 v184, s65
    s_mov_b64 exec, 1
    ds_write_b128 v184, v[176:179] offset:4096
    ds_write_b128 v184, v[176:179] offset:4112
    ds_write_b128 v184, v[180:183] offset:{OOFF+4096}
    ds_write_b128 v184, v[176:179] offset:{OOFF+4112}
    s_mov_b64 exec, -1""")
    a("L_kdone:")
    a.lgq = ["kb"]
    a.stamp()
    if stop == 1:
        dump_lds(a, 0, 17408, 0); return finish(a)
    XF = 64; ONES = 124; S1, S2 = 128, 132
    a(f"""v_and_b32 v32, 15, v1
    v_mul_u32_u24 v2, {XS}, v32
    v_lshrrev_b32 v33, 4, v1
    v_lshl_add_u32 v2, v33, 4, v2
    v_add_u32 v2, {LX}, v2
    s_mul_i32 s64, s{WV}, {16*XS}
    v_add_u32 v34, s64, v2
    v_mov_b32 v136, 0x3f803f80
    v_mov_b32 v137, 0x3f803f80
    v_mov_b32 v138, 0x3f803f80
    v_mov_b32 v139, 0x3f803f80""")
    a.vmwait("x")
    a.barrier()
    a.stamp()
    for s in range(12):
        a.lg(f"ds_read_b128 {vr(XF+4*s)}, v34 offset:{64*s}", f"xs{s}")
    for s in range(16):
        a.lgwait(f"xs{s}")
        a(f"v_mfma_f32_16x16x32_bf16 {vr(S1)}, v[136:139], {vr(XF+4*s)}, {vr(S1) if s else 0}")
        a(f"v_mfma_f32_16x16x32_bf16 {vr(S2)}, {vr(XF+4*s)}, {vr(XF+4*s)}, {vr(S2) if s else 0}")
        if s + 12 < 16:
            a.lg(f"ds_read_b128 {vr(XF+4*(s+12))}, v34 offset:{64*(s+12)}", f"xs{s+12}")
    a(f"""v_lshrrev_b32 v35, 2, v32
    v_lshl_add_u32 v35, v33, 3, v35
    v_mul_u32_u24 v35, {XS}, v35
    v_and_b32 v36, 3, v1
    v_lshl_add_u32 v35, v36, 3, v35
    s_lshl_b32 s64, s{CB1}, 7
    s_lshl_b32 s65, s{WV}, 5
    s_add_u32 s64, s64, s65
    s_add_u32 s64, s64, {LX}
    v_add_u32 v35, s64, v35
    v_lshlrev_b32 v37, 5, v33
    v_add_u32 v37, {STAT}, v37
    v_cmp_eq_u32 vcc, 1, v36
    v_cmp_eq_u32 s[64:65], 2, v36
    v_cmp_eq_u32 s[66:67], 3, v36
    v_cndmask_b32 v40, v{S2}, v{S2+1}, vcc
    v_cndmask_b32 v40, v40, v{S2+2}, s[64:65]
    v_cndmask_b32 v40, v40, v{S2+3}, s[66:67]
    v_mul_f32 v41, 0x3b000000, v{S1}
    v_mul_f32 v40, 0x3b000000, v40
    v_fma_f32 v40, -v41, v41, v40
    v_max_f32 v40, 0, v40""")
    bf16r(a, 41, 41); bf16r(a, 40, 40)
    a("v_add_f32 v40, 0x3727c5ac, v40")
    bf16r(a, 40, 40)
    a("v_sqrt_f32 v40, v40")
    bf16r(a, 40, 40)
    a(f"""v_rcp_f32 v40, v40
    v_lshrrev_b32 v38, 2, v32
    v_cmp_eq_u32 vcc, v38, v33
    s_lshl_b32 s64, s{WV}, 6
    s_add_u32 s64, s64, {STAT}
    v_lshlrev_b32 v39, 2, v32
    v_add_u32 v39, s64, v39
    s_and_saveexec_b64 s[68:69], vcc""")
    a.lg("ds_write_b32 v39, v41", "st")
    a.lg("ds_write_b32 v39, v40 offset:256", "st")
    a("s_mov_b64 exec, s[68:69]")
    XT = 64
    for j in range(2):
        a.lg(f"ds_read_b64_tr_b16 {vr(XT+4*j,2)}, v35 offset:{j*32*XS}", "xt")
        a.lg(f"ds_read_b64_tr_b16 {vr(XT+4*j+2,2)}, v35 offset:{j*32*XS+4*XS}", "xt")
    a.barrier()
    SM, SRD_ = 72, 88
    for j in range(2):
        a.lg(f"ds_read_b128 {vr(SM+8*j)}, v37 offset:{128*j}", f"sm{j}")
        a.lg(f"ds_read_b128 {vr(SM+8*j+4)}, v37 offset:{128*j+16}", f"sm{j}")
        a.lg(f"ds_read_b128 {vr(SRD_+8*j)}, v37 offset:{256+128*j}", f"sm{j}")
        a.lg(f"ds_read_b128 {vr(SRD_+8*j+4)}, v37 offset:{256+128*j+16}", f"sm{j}")
    a(f"""s_lshl_b32 s64, s{CB1}, 6
    s_lshl_b32 s65, s{WV}, 4
    s_add_u32 s64, s64, s65
    s_lshl_b32 s64, s64, 12
    s_lshl_b32 s65, s{RB1}, 7
    s_add_u32 s64, s64, s65
    s_add_u32 s64, s64, {WS_XNT}
    v_lshlrev_b32 v38, 12, v32
    v_lshl_add_u32 v38, v33, 4, v38
    v_add_u32 v38, s64, v38""")
    for j in range(2):
        a.lgwait(f"sm{j}")
        for i in range(4):
            x = XT + 4*j + i; t = 104 + 2*(i % 2)
            a(f"""v_lshlrev_b32 v{t}, 16, v{x}
            v_and_b32 v{t+1}, 0xffff0000, v{x}
            v_pk_add_f32 {vr(t,2)}, {vr(t,2)}, {vr(SM+8*j+2*i,2)} neg_lo:[0,1] neg_hi:[0,1]
            v_cvt_pk_bf16_f32 v{x}, v{t}, v{t+1}
            v_lshlrev_b32 v{t}, 16, v{x}
            v_and_b32 v{t+1}, 0xffff0000, v{x}
            v_pk_mul_f32 {vr(t,2)}, {vr(t,2)}, {vr(SRD_+8*j+2*i,2)}
            v_cvt_pk_bf16_f32 v{108+4*j+i}, v{t}, v{t+1}""")
        a.vm(f"buffer_store_dwordx4 {vr(108+4*j)}, v38, {sr(SWS)}, 0 offen offset:{64*j} sc1", "xnt")
    a.stamp()
    if stop == 2:
        a.vm0(); return finish(a)
    ACC, CSM, ONES, AB, BB = 64, 112, 124, 128, 152
    a(f"""v_lshrrev_b32 v40, 1, v33
    v_lshlrev_b32 v40, 4, v40
    v_and_b32 v41, 1, v33
    v_lshl_add_u32 v40, v41, 2, v40
    v_lshrrev_b32 v41, 2, v32
    v_add_u32 v40, v40, v41
    v_mul_u32_u24 v40, 96, v40
    v_lshl_add_u32 v40, v36, 3, v40
    v_add_u32 v3, s101, v40
    v_mov_b32 v{ONES}, 0x3f803f80
    v_mov_b32 v{ONES+1}, 0x3f803f80
    v_mov_b32 v{ONES+2}, 0x3f803f80
    v_mov_b32 v{ONES+3}, 0x3f803f80""")
    a(f"""s_lshl_b32 s96, s{CB1}, 2
    s_add_u32 s96, s96, s{WV}
    s_lshl_b32 s97, s{RB1}, 5
    s_add_u32 s97, s97, s96
    s_lshl_b32 s97, s97, 3
    s_add_u32 s97, s97, {WS_FH}
    s_lshl_b32 s96, s96, 5
    s_add_u32 s96, s96, s{RB1}
    s_lshl_b32 s96, s96, 3
    s_add_u32 s96, s96, {WS_FX}""")
    a(f"""s_lshl_b32 s64, s{CB1}, 2
    s_lshr_b32 s65, s{RB1}, 3
    s_add_u32 s64, s64, s65
    s_lshl_b32 s64, s64, 8
    s_add_u32 s64, s64, {WS_FX}
    v_lshlrev_b32 v24, 3, v1
    v_add_u32 v24, s64, v24
    s_mul_i32 s64, s100, 44032
    v_subrev_u32 v21, 128, v0
    v_lshlrev_b32 v21, 7, v21
    v_add_u32 v21, s64, v21
    v_mov_b32 v41, {OOB}
    v_cmp_gt_u32 vcc, 128, v0
    v_cndmask_b32 v21, v21, v41, vcc
    v_add_u32 v25, 32768, v21
    v_cmp_gt_u32 vcc, {128+88}, v0
    v_cndmask_b32 v25, v41, v25, vcc""")
    def rd_x(step, tt):
        b = BB + 16*(step % 2) + 4*tt
        a.lg(f"ds_read_b128 {vr(b)}, v2 offset:{tt*16*XS + 64*step}", f"f{step}")
    def rd_w(step, u, h):
        b = AB + 12*(step % 2) + 4*u + 2*h
        a.lg(f"ds_read_b64_tr_b16 {vr(b,2)}, v3 offset:{(step % RST)*RSL + 32*u + 768*h}", f"f{step}")
    for tt in range(4): rd_x(0, tt)
    a.vmwait("w1s0")
    for u in range(3):
        rd_w(0, u, 0); rd_w(0, u, 1)
    for k in range(16):
        fill = []
        if k + RST < 16:
            for q in range(3): fill.append(lambda q=q: ring_dma(k + RST, q))
        if k == 12:
            fill.append(lambda: a.vm(f"buffer_load_dwordx2 v[22:23], v24, {sr(SWS)}, 0 offen sc1", "pfx"))
            if touch2:
                fill.append(lambda: a.vm(f"buffer_load_dword v26, v21, {sr(SW2)}, 0 offen", "t2"))
                fill.append(lambda: a.vm(f"buffer_load_dword v27, v21, {sr(SW2)}, 0 offen offset:0", "t2") if False else (a("s_mov_b32 s66, 16384"), a.vm(f"buffer_load_dword v27, v21, {sr(SW2)}, s66 offen", "t2")))
                fill.append(lambda: a.vm(f"buffer_load_dword v28, v25, {sr(SW2)}, 0 offen", "t2"))
        if k + 1 < 16:
            for tt in range(4): fill.append(lambda tt=tt: rd_x(k + 1, tt))
            def w0():
                a.vmwait(f"w1s{k+1}")
                if k == 3: flag(a, 96, 184, "fx")
                rd_w(k + 1, 0, 0); rd_w(k + 1, 0, 1)
            fill.append(w0)
            fill.append(lambda: (rd_w(k + 1, 1, 0), rd_w(k + 1, 1, 1)))
            fill.append(lambda: (rd_w(k + 1, 2, 0), rd_w(k + 1, 2, 1)))
        a.lgwait(f"f{k}")
        m = 0
        for u in range(3):
            A = AB + 12*(k % 2) + 4*u
            for tt in range(5):
                if tt < 4:
                    c = ACC + 16*u + 4*tt; B = BB + 16*(k % 2) + 4*tt
                else:
                    c = CSM + 4*u; B = ONES
                a(f"v_mfma_f32_16x16x32_bf16 {vr(c)}, {vr(A)}, {vr(B)}, {vr(c) if k else 0}")
                if fill: fill.pop(0)()
        while fill: fill.pop(0)()
    a.stamp()
    MM, RD, NR = 184, 188, 192
    UD = 224
    a(f"""v_lshlrev_b32 v40, 2, v32
    v_add_u32 v40, {STAT}, v40""")
    for tt in range(4):
        a.lg(f"ds_read_b32 v{MM+tt}, v40 offset:{64*tt}", "ep")
        a.lg(f"ds_read_b32 v{RD+tt}, v40 offset:{256+64*tt}", "ep")
    a(f"""v_and_b32 v41, 31, v1
    v_lshlrev_b32 v41, 10, v41
    v_lshrrev_b32 v42, 5, v1
    v_lshl_add_u32 v41, v42, 4, v41
    s_lshl_b32 s64, s{RB2}, 16
    s_and_b32 s65, s{WV}, 1
    s_lshl_b32 s65, s65, 15
    s_add_u32 s64, s64, s65
    s_lshl_b32 s65, s{CB2}, 7
    s_add_u32 s64, s64, s65
    s_lshr_b32 s65, s{WV}, 1
    s_lshl_b32 s65, s65, 6
    s_add_u32 s64, s64, s65
    v_add_u32 v29, s64, v41""")
    a(f"""s_cmp_ge_u32 s{WV}, 2
    s_cbranch_scc1 L_nou""")
    poll(a, 24, 22, "s_mov_b64 exec, 0xffffffff", "x", first_issued=True)
    a(f"""s_lshl_b32 s64, s{CW}, 1
    s_add_u32 s64, s64, s{WV}
    s_lshl_b32 s64, s64, 12
    s_add_u32 s64, s64, {WS_XNT}""")
    for i in range(4):
        a(f"buffer_load_dwordx4 {vr(UD+4*i)}, v7, {sr(SWS)}, s64 offen offset:{1024*i} sc1")
    a("L_nou:")
    a.vm(f"buffer_load_dwordx4 v[8:11], v29, {sr(SX)}, 0 offen", "xf")
    a.vm(f"buffer_load_dwordx4 v[12:15], v29, {sr(SX)}, 0 offen offset:32", "xf")
    a.stamp()
    a(f"""s_mul_i32 s64, s{RB1}, {HRB}
    s_lshl_b32 s65, s98, 11
    s_add_u32 s64, s64, s65
    s_add_u32 s64, s64, {WS_H}
    v_add_u32 v30, s64, v7
    s_mov_b32 s64, {L2E}""")
    a.lgwait("ep")
    for tt in range(4):
        a(f"v_mul_f32_e64 v{NR+tt}, -v{RD+tt}, s64")
    for u in range(3):
        a(f"""s_cmp_gt_u32 s99, {u}
        s_cselect_b32 s65, {u*2048}, {OOB}""")
        for t32 in range(2):
            P = 216 + 4*t32
            for th in range(2):
                tt = 2*t32 + th
                (mo, ms), (ro, rs), (no, ns) = bc(MM+tt), bc(RD+tt), bc(NR+tt)
                for pr in range(2):
                    c = ACC + 16*u + 4*tt + 2*pr; t = 196 + 4*pr + 8*(tt % 2)
                    a(f"""v_pk_fma_f32 {vr(c,2)}, {vr(CSM+4*u+2*pr,2)}, {mo}, {vr(c,2)} op_sel:[0,{ms},0] op_sel_hi:[1,{ms},1] neg_lo:[0,1,0] neg_hi:[0,1,0]
                    v_pk_mul_f32 {vr(t,2)}, {vr(c,2)}, {no} op_sel:[0,{ns}] op_sel_hi:[1,{ns}]
                    v_pk_mul_f32 {vr(c,2)}, {vr(c,2)}, {ro} op_sel:[0,{rs}] op_sel_hi:[1,{rs}]
                    v_exp_f32 v{t}, v{t}
                    v_exp_f32 v{t+1}, v{t+1}""")
                for pr in range(2):
                    t = 196 + 4*pr + 8*(tt % 2)
                    a(f"""v_pk_add_f32 {vr(t,2)}, {vr(t,2)}, 1.0 op_sel_hi:[1,0]
                    v_rcp_f32 v{t}, v{t}
                    v_rcp_f32 v{t+1}, v{t+1}""")
                for pr in range(2):
                    c = ACC + 16*u + 4*tt + 2*pr; t = 196 + 4*pr + 8*(tt % 2)
                    a(f"""v_pk_mul_f32 {vr(c,2)}, {vr(c,2)}, {vr(t,2)}
                    v_cvt_pk_bf16_f32 v{P+2*th+pr}, v{c}, v{c+1}""")
            a(f"""v_permlane16_swap_b32 v{P}, v{P+2}
            v_permlane16_swap_b32 v{P+1}, v{P+3}""")
            a.vm(f"buffer_store_dwordx4 {vr(P)}, v30, {sr(SWS)}, s65 offen offset:{1024*t32} sc1", "hst")
        if u == 0:
            a(f"""s_cmp_ge_u32 s{WV}, 2
            s_cbranch_scc1 L_nou2
            s_mul_i32 s66, s{WV}, {USZ}
            s_add_u32 s66, s66, {U0}
            v_add_u32 v40, s66, v7
            v_mov_b32 v212, 0
            v_mov_b32 v213, 0
            v_mov_b32 v214, 0
            v_mov_b32 v215, 0
            s_mov_b64 exec, 0x3fffffff
            ds_write_b128 v40, v[212:215]
            s_mov_b64 exec, -1
            s_waitcnt vmcnt(4)""")
            for i in range(4):
                a(f"ds_write_b128 v40, {vr(UD+4*i)} offset:{480+1024*i}")
            a("L_nou2:")
    a.stamp()
    if stop == 4:
        a.vm0(); return finish(a)
    a.barrier()
    a(f"""v_lshrrev_b32 v40, 3, v1
    v_and_b32 v41, 7, v1
    v_and_b32 v42, 2, v40
    v_lshlrev_b32 v42, 1, v42
    v_xor_b32 v41, v41, v42
    v_lshlrev_b32 v40, 10, v40
    v_lshl_add_u32 v40, v41, 4, v40
    s_mul_i32 s64, s{WV}, {352*1024}
    s_lshl_b32 s65, s{CB2}, 7
    s_add_u32 s64, s64, s65
    v_add_u32 v4, s64, v40
    s_mul_i32 s101, s{WV}, {W2SZ}
    s_add_u32 s101, s101, {W2ST}""")
    def w2_dma(step, h):
        a(f"s_add_u32 m0, s101, {(step % 14)*2048 + 1024*h}")
        a(f"s_mov_b32 s66, {step*16384 + 8192*h}")
        a.vm(f"buffer_load_dwordx4 v4, {sr(SW2)}, s66 offen lds", "w2a" if step < 14 else "w2b")
    for st in range(14):
        w2_dma(st, 0); w2_dma(st, 1)
    KA = [16, 17, 18, 19]; UB = 20
    a(f"""v_lshlrev_b32 v40, 3, v33
    v_sub_u32 v40, v40, v32
    v_add_u32 v40, 2032, v40
    v_lshrrev_b32 v40, 1, v40
    v_lshlrev_b32 v40, 2, v40
    v_and_b32 v41, 1, v1
    v_mul_u32_u24 v41, {OOFF}, v41
    v_sub_u32 v40, v40, v41
    s_lshr_b32 s64, s{WV}, 1
    s_mul_i32 s65, s64, 8704
    s_and_b32 s66, s{WV}, 1
    s_lshl_b32 s67, s66, 8
    s_sub_u32 s65, s65, s67
    s_add_u32 s65, s65, {OOFF - 192 - 512}
    v_add_u32 v{KA[0]}, s65, v40
    v_subrev_u32 v{KA[1]}, 1024, v{KA[0]}
    v_subrev_u32 v{KA[2]}, 2048, v{KA[0]}
    v_subrev_u32 v{KA[3]}, 3072, v{KA[0]}
    s_mul_i32 s65, s64, {USZ}
    s_add_u32 s65, s65, {U0 + 256}
    s_sub_u32 s65, s65, s67
    v_lshlrev_b32 v40, 5, v32
    v_lshl_add_u32 v40, v33, 4, v40
    v_add_u32 v{UB}, s65, v40""")
    a(f"""v_lshrrev_b32 v40, 1, v33
    v_lshlrev_b32 v40, 3, v40
    v_lshrrev_b32 v41, 2, v32
    v_add_u32 v40, v40, v41
    v_lshlrev_b32 v40, 7, v40
    v_and_b32 v42, 1, v33
    v_lshl_add_u32 v40, v42, 5, v40
    v_lshl_add_u32 v40, v36, 3, v40
    v_add_u32 v40, s101, v40
    v_and_b32 v41, 2, v41
    v_lshl_add_u32 v5, v41, 5, v40
    v_xor_b32 v41, 2, v41
    v_lshl_add_u32 v6, v41, 5, v40
    v_mov_b32 v21, v32
    v_mov_b32 v22, v33""")
    CA, FA, FB = 32, 64, 128
    def rdA(g, i, h):
        b = FA + 32*(g % 2) + 4*i + 2*h
        o = (128 if i % 2 == 0 else 0) + 16*(3 - g) + 2*h
        a.lg(f"ds_read2_b32 {vr(b,2)}, v{KA[i//2]} offset0:{o} offset1:{o+1}", f"c{g}_{i}")
    def rdB(g, d):
        b = FB + 32*(g % 2) + 4*d
        a.lg(f"ds_read_b128 {vr(b)}, v{UB} offset:{64*(3-g) + 512*d}", f"c{g}_{d}")
    def rd_w2(step, dm, h):
        b = 8*step + 4*dm + 2*h
        a.lg(f"ds_read_b64_tr_b16 {ar(b,2)}, v{5+dm} offset:{(step % 14)*2048 + 512*h}", f"w2r{step}")
    for i in range(8):
        rdA(0, i, 0); rdA(0, i, 1); rdB(0, i)
    order = sorted([(i, d) for i in range(8) for d in range(8 - i)], key=lambda x: (max(x), x[0] + x[1]))
    for g in range(4):
        fill = []
        if g + 1 < 4:
            for i in range(8):
                fill.append(lambda i=i: rdA(g + 1, i, 0)); fill.append(lambda i=i: rdA(g + 1, i, 1)); fill.append(lambda i=i: rdB(g + 1, i))
        if g == 3:
            for st in range(14):
                for dm in range(2):
                    fill.append(lambda st=st, dm=dm: (rd_w2(st, dm, 0), rd_w2(st, dm, 1)))
        if g == 2:
            a.vmwait("hst"); flag(a, 97, 240, "fh")
            a.stamp()
        if g == 3:
            a.vmwait("w2a")
        seen = set(); lastmax = -1
        for (i, d) in order:
            c = i + d
            if max(i, d) != lastmax:
                lastmax = max(i, d); a.lgwait(f"c{g}_{lastmax}")
            first = (g == 0 and c not in seen); seen.add(c)
            a(f"v_mfma_f32_16x16x32_bf16 {vr(CA+4*c)}, {vr(FA+32*(g%2)+4*i)}, {vr(FB+32*(g%2)+4*d)}, {0 if first else vr(CA+4*c)}")
            if fill and (g > 0 or lastmax >= 2): fill.pop(0)()
        while fill: fill.pop(0)()
    a.lg0()
    for st in range(14, 22):
        w2_dma(st, 0); w2_dma(st, 1)
    a.stamp()
    a(f"""s_lshl_b32 s64, s{WV}, 12
    s_add_u32 s64, s64, {CS}
    s_xor_b32 s65, s{WV}, 1
    s_lshl_b32 s65, s65, 12
    s_add_u32 s65, s65, {CS}
    v_add_u32 v23, s64, v7
    v_add_u32 v24, s65, v7
    s_bitcmp1_b32 s{WV}, 0
    s_cbranch_scc1 L_codd""")
    for i in range(4): a(f"ds_write_b128 v23, {vr(CA+16+4*i)} offset:{1024*i}")
    a("s_branch L_cjoin")
    a("L_codd:")
    a("s_nop 7")
    for i in range(4): a(f"ds_write_b128 v23, {vr(CA+4*i)} offset:{1024*i}")
    a("s_nop 1")
    for i in range(8): a(f"v_pk_mul_f32 {vr(CA+2*i,2)}, {vr(CA+16+2*i,2)}, 1.0 op_sel_hi:[1,0]")
    a("L_cjoin:")
    masks = []
    for w in range(4):
        lo, hi = 22*w, min(22*w + 22, 86); m = 0
        for cb in range(8):
            u0, sz = units(cb)
            for wp in range(4):
                s0, s1 = u0 + 3*wp, u0 + min(3*wp + 3, sz)
                if s0 < hi and s1 > lo: m |= 1 << (cb*4 + wp)
        masks.append(m)
    a(f"""s_lshl_b32 s64, s{RB2}, 8
    s_add_u32 s64, s64, {WS_FH}
    v_lshlrev_b32 v25, 3, v1
    v_add_u32 v25, s64, v25
    s_mov_b32 s98, {masks[0]}
    s_cmp_eq_u32 s{WV}, 1
    s_cselect_b32 s98, {masks[1]}, s98
    s_cmp_eq_u32 s{WV}, 2
    s_cselect_b32 s98, {masks[2]}, s98
    s_cmp_eq_u32 s{WV}, 3
    s_cselect_b32 s98, {masks[3]}, s98
    s_mov_b32 s99, 0""")
    a.vm(f"buffer_load_dwordx2 v[26:27], v25, {sr(SWS)}, 0 offen sc1", "pfh")
    a(f"""s_lshr_b32 s64, s{WV}, 1
    s_mul_i32 s65, s64, {USZ}
    s_and_b32 s66, s{WV}, 1
    s_lshl_b32 s67, s66, 11
    s_add_u32 s65, s65, s67
    s_add_u32 s65, s65, {U0 + 480}
    v_lshlrev_b32 v28, 5, v21
    v_lshl_add_u32 v28, v22, 3, v28
    v_add_u32 v28, s65, v28""")
    a.barrier()
    for i in range(4): a.lg(f"ds_read_b128 {vr(240+4*i)}, v24 offset:{1024*i}", f"cr{i}")
    for i in range(4): a.lg(f"ds_read_b64 {vr(48+2*i,2)}, v28 offset:{512*i}", "cu")
    poll(a, 25, 26, "s_mov_b64 exec, s[98:99]", "h", first_issued=True); a.vmq = []
    a.stamp()
    HF = 64
    hl = [0]
    a(f"s_mul_i32 s100, s{WV}, {22*2048}")
    def h_load():
        i = hl[0]; hl[0] += 1
        if i % 4 == 0 and i: a("s_add_u32 s100, s100, 4096")
        a.vm(f"buffer_load_dwordx4 {vr(HF+4*i)}, v7, {sr(SH)}, s100 offen offset:{1024*(i%4)} sc1", f"h{i//2}")
    for i in range(16): h_load()
    a(f"""s_or_b32 s64, s2, s{WV}
    s_cmp_lg_u32 s64, 0
    s_cselect_b32 s64, {OOB}, {WS_EP}
    v_mov_b32 v26, s{TAG}
    v_mov_b32 v27, s64
    s_mov_b64 exec, 1""")
    a.vm(f"buffer_store_dword v26, v27, {sr(SWS)}, 0 offen sc1", "ep")
    a("s_mov_b64 exec, -1")
    a(f"""s_lshl_b32 s64, s{CW}, 1
    s_lshr_b32 s65, s{WV}, 1
    s_add_u32 s64, s64, s65
    s_lshl_b32 s64, s64, 12
    s_add_u32 s64, s64, s67
    s_add_u32 s64, s64, {WS_ST}
    v_and_b32 v23, 1, v22
    v_lshlrev_b32 v23, 9, v23
    v_lshl_add_u32 v23, v21, 5, v23
    v_lshrrev_b32 v24, 1, v22
    v_lshl_add_u32 v23, v24, 4, v23
    v_add_u32 v23, s64, v23
    v_mov_b32 v24, s31""")
    (do, ds_) = bc(24)
    for ci in range(4):
        a.lgwait(f"cr{ci}")
        if ci == 0: a.lgwait("cu")
        for pr in range(2):
            y = CA + 4*ci + 2*pr; uu = 48 + 2*ci + pr; t = 56 + 2*pr; o = 60 + 2*(ci % 2) + pr
            a(f"""v_pk_add_f32 {vr(y,2)}, {vr(y,2)}, {vr(240+4*ci+2*pr,2)}
            v_lshlrev_b32 v{t}, 16, v{uu}
            v_and_b32 v{t+1}, 0xffff0000, v{uu}
            v_cvt_pk_bf16_f32 v{y}, v{y}, v{y+1}
            v_pk_mul_f32 {vr(t,2)}, {vr(t,2)}, {do} op_sel:[0,{ds_}] op_sel_hi:[1,{ds_}]
            v_and_b32 v{y+1}, 0xffff0000, v{y}
            v_lshlrev_b32 v{y}, 16, v{y}
            v_cvt_pk_bf16_f32 v{uu}, v{t}, v{t+1}
            v_lshlrev_b32 v{t}, 16, v{uu}
            v_and_b32 v{t+1}, 0xffff0000, v{uu}
            v_pk_add_f32 {vr(y,2)}, {vr(y,2)}, {vr(t,2)}
            v_cvt_pk_bf16_f32 v{o}, v{y}, v{y+1}""")
        if ci % 2 == 1:
            a(f"""v_permlane16_swap_b32 v60, v62
            v_permlane16_swap_b32 v61, v63""")
            a.vm(f"buffer_store_dwordx4 v[60:63], v23, {sr(SWS)}, 0 offen offset:{1024*(ci//2)} sc1", "sst")
    while hl[0] < 44: h_load()
    if stop == 5:
        a.vm0(); return finish(a)
    a(f"""s_lshl_b32 s96, s{CB1}, 1
    s_and_b32 s64, s{WV}, 1
    s_add_u32 s96, s96, s64
    s_lshl_b32 s96, s96, 6
    s_lshl_b32 s64, s{RB1}, 1
    s_add_u32 s96, s96, s64
    s_lshr_b32 s64, s{WV}, 1
    s_add_u32 s96, s96, s64
    s_lshl_b32 s96, s96, 3
    s_add_u32 s96, s96, {WS_FS}
    s_lshl_b32 s64, s{CB2}, 1
    s_lshr_b32 s65, s{RB2}, 4
    s_add_u32 s64, s64, s65
    s_lshl_b32 s64, s64, 9
    s_lshl_b32 s65, s{WV}, 7
    s_add_u32 s64, s64, s65
    s_add_u32 s64, s64, {WS_FS}
    v_lshlrev_b32 v25, 3, v1
    v_add_u32 v25, s64, v25
    s_lshl_b32 s64, s{CB2}, 6
    s_lshl_b32 s65, s{WV}, 4
    s_add_u32 s64, s64, s65
    s_lshl_b32 s64, s64, 12
    s_lshl_b32 s65, s{RB2}, 7
    s_add_u32 s64, s64, s65
    s_add_u32 s64, s64, {WS_ST}
    v_lshrrev_b32 v26, 3, v1
    v_lshlrev_b32 v26, 12, v26
    v_and_b32 v27, 7, v1
    v_lshl_add_u32 v26, v27, 4, v26
    v_add_u32 v26, s64, v26""")
    GA = 176
    for st in range(22):
        fill = []
        if st < 8:
            fill = [lambda: (rd_w2(14 + st, 0, 0), rd_w2(14 + st, 0, 1)), lambda: (rd_w2(14 + st, 1, 0), rd_w2(14 + st, 1, 1))]
        a.vmwait(f"h{st}")
        if st == 8: flag(a, 96, 16, "fs")
        if st >= 14: a.lgwait(f"w2r{st}")
        for dm in range(2):
            for tn in range(2):
                c = GA + 32*dm + 16*tn
                a(f"v_mfma_f32_32x32x16_bf16 {ar(c,16)}, {ar(8*st+4*dm)}, {vr(HF+8*st+4*tn)}, {ar(c,16) if st else 0}")
                if fill: fill.pop(0)()
        if st == 18:
            a.vm(f"buffer_load_dwordx2 v[32:33], v25, {sr(SWS)}, 0 offen sc1", "pfs")
    a.stamp()
    poll(a, 25, 32, "s_mov_b64 exec, 0xffff", "s", first_issued=True); a.vmq = []
    a(f"s_mov_b32 s64, 32768")
    a.vm(f"buffer_load_dwordx4 v[112:115], v26, {sr(SWS)}, 0 offen sc1", "sl")
    a.vm(f"buffer_load_dwordx4 v[116:119], v26, {sr(SWS)}, s64 offen sc1", "sl")
    a(f"v_add_u32 v23, s101, v7")
    for w in range(4):
        lbl = f"L_q{w}"
        a(f"""s_cmp_eq_u32 s{WV}, {w}
        s_cbranch_scc1 {lbl}a
        s_xor_b32 s64, s{WV}, {w}
        s_lshl_b32 s64, s64, 12
        s_sub_u32 s64, s64, 4096
        v_add_u32 v24, s64, v23""")
        for i in range(4): a(f"ds_write_b128 v24, {ar(GA+16*w+4*i)} offset:{1024*i}")
        a(f"s_branch {lbl}b")
        a(f"{lbl}a:")
        if w == 0: a("s_nop 7")
        for i in range(16): a(f"v_accvgpr_read_b32 v{32+i}, a{GA+16*w+i}")
        a(f"{lbl}b:")
    a.vmwait("sl")
    a.lg(f"ds_write_b128 v23, v[112:115] offset:12288", "x")
    a.lg(f"ds_write_b128 v23, v[116:119] offset:13312", "x")
    for k in range(1, 4):
        a(f"""s_xor_b32 s64, s{WV}, {k}
        s_mul_i32 s64, s64, {W2SZ}
        s_add_u32 s64, s64, {W2ST + (k-1)*4096}
        v_add_u32 v{16+k}, s64, v7""")
    a(f"""v_lshrrev_b32 v24, 1, v22
    v_lshlrev_b32 v24, 2, v24
    v_lshrrev_b32 v27, 2, v21
    v_add_u32 v24, v24, v27
    v_lshlrev_b32 v24, 7, v24
    v_and_b32 v27, 1, v22
    v_lshl_add_u32 v24, v27, 5, v24
    v_and_b32 v27, 3, v1
    v_lshl_add_u32 v24, v27, 3, v24
    s_lshr_b32 s64, s{WV}, 1
    s_mul_i32 s64, s64, {2*W2SZ}
    s_and_b32 s65, s{WV}, 1
    s_lshl_b32 s65, s65, 6
    s_add_u32 s64, s64, s65
    s_add_u32 s64, s64, {W2ST + 12288}
    v_add_u32 v20, s64, v24
    v_permlane32_swap_b32 v8, v10
    v_permlane32_swap_b32 v9, v11
    v_permlane32_swap_b32 v12, v14
    v_permlane32_swap_b32 v13, v15
    s_mov_b32 s64, {L2E | 0x80000000}""")
    a.barrier()
    for g4 in range(4):
        for k in range(1, 4):
            a.lg(f"ds_read_b128 {vr(64+16*(k-1)+4*g4)}, v{16+k} offset:{1024*g4}", f"r{g4}")
        a.lg(f"ds_read_b64_tr_b16 {vr(112+2*g4,2)}, v20 offset:{(g4//2)*W2SZ + (g4%2)*1024}", f"r{g4}")
    for g4 in range(4):
        a.lgwait(f"r{g4}")
        for pr in range(2):
            o = 32 + 4*g4 + 2*pr; t = 120 + 8*pr
            p1, p2, p3 = 64 + 4*g4 + 2*pr, 80 + 4*g4 + 2*pr, 96 + 4*g4 + 2*pr
            a(f"""v_pk_add_f32 {vr(o,2)}, {vr(o,2)}, {vr(p1,2)}
            v_pk_add_f32 {vr(p2,2)}, {vr(p2,2)}, {vr(p3,2)}
            v_pk_add_f32 {vr(o,2)}, {vr(o,2)}, {vr(p2,2)}
            v_mul_f32 v{t}, s64, v{o}
            v_mul_f32 v{t+1}, s64, v{o+1}
            v_exp_f32 v{t}, v{t}
            v_exp_f32 v{t+1}, v{t+1}
            v_lshlrev_b32 v{t+2}, 16, v{112+2*g4+pr}
            v_and_b32 v{t+3}, 0xffff0000, v{112+2*g4+pr}
            v_pk_add_f32 {vr(t,2)}, {vr(t,2)}, 1.0 op_sel_hi:[1,0]
            v_lshlrev_b32 v{t+4}, 16, v{8+2*g4+pr}
            v_rcp_f32 v{t}, v{t}
            v_rcp_f32 v{t+1}, v{t+1}
            v_and_b32 v{t+5}, 0xffff0000, v{8+2*g4+pr}
            v_pk_mul_f32 {vr(o,2)}, {vr(o,2)}, {vr(t+2,2)}
            v_pk_fma_f32 {vr(o,2)}, {vr(o,2)}, {vr(t,2)}, {vr(t+4,2)}
            v_cvt_pk_bf16_f32 v{136+2*g4+pr}, v{o}, v{o+1}""")
        if g4 % 2 == 1:
            b = 136 + 2*(g4 - 1)
            a(f"""v_permlane32_swap_b32 v{b}, v{b+2}
            v_permlane32_swap_b32 v{b+1}, v{b+3}""")
            a.vm(f"buffer_store_dwordx4 {vr(b)}, v29, {sr(SOUT)}, 0 offen offset:{32*(g4//2)}", "out")
    return finish(a)

def finish(a):
    if a.stamps:
        a.vm0()
        a.stamp()
        n = a.nst
        a(f"""v_cmp_eq_u32 vcc, 0, v0
        s_and_saveexec_b64 s[68:69], vcc
        s_cbranch_execz L_end
        s_lshl_b32 s67, s2, 7
        s_add_u32 s67, s67, {STAMP_OFF}
        v_mov_b32 v1, s67""")
        for i in range(n):
            a(f"""v_mov_b32 v2, s{70+2*i}
            v_mov_b32 v3, s{71+2*i}
            buffer_store_dwordx2 v[2:3], v1, {sr(SWS)}, 0 offen offset:{8*i}
            s_nop 1""")
    if DBGSPAN:
        srd(a, 32, 26, 256)
        a("""s_mov_b64 exec, 1
        v_mov_b32 v1, 0""")
        for i in range(a.nst):
            a(f"""v_mov_b32 v2, s{70+2*i}
            v_not_b32 v3, v2
            buffer_atomic_umax v2, v1, s[32:35], 0 offen offset:{4*i} sc1""")
            if i == 0: a("buffer_atomic_umax v3, v1, s[32:35], 0 offen offset:60 sc1")
            a("s_nop 1")
    a("L_end:")
    lines, n = hz.fix(a.lines)
    return "\n".join(lines) + "\n", n, a.nst

HEADER = open("recurrent_scan__ssm_conv_s4d__dense_activation_silu__prompt.s.ref").read().split("; Override")[0]
def wrap(body):
    return f"""{HEADER}; @launch grid=(256,1,1) block=(256,1,1) lds={LDS_TOTAL}
.amdgcn_target "amdgcn-amd-amdhsa--gfx950"
.text
.globl {KN}
.p2align 8
.type {KN},@function
{KN}:
{body}    s_endpgm
.section .rodata,"a"
.p2align 6
.amdhsa_kernel {KN}
  .amdhsa_next_free_vgpr 496
  .amdhsa_next_free_sgpr 102
  .amdhsa_accum_offset 256
  .amdhsa_group_segment_fixed_size 0
  .amdhsa_kernarg_size 104
  .amdhsa_user_sgpr_count 2
  .amdhsa_user_sgpr_kernarg_segment_ptr 1
  .amdhsa_system_sgpr_workgroup_id_x 1
.end_amdhsa_kernel
"""
if __name__ == "__main__":
    import argparse
    ap = argparse.ArgumentParser()
    ap.add_argument("out"); ap.add_argument("--stop", type=int, default=99); ap.add_argument("--stamps", action="store_true")
    ap.add_argument("--map1", type=int, default=1); ap.add_argument("--touch1", type=int, default=1); ap.add_argument("--touch2", type=int, default=1)
    ap.add_argument("--cyc", action="store_true")
    ap.add_argument("--dbg", action="store_true")
    x = ap.parse_args()
    if x.cyc: CLK = "s_memtime"
    if x.dbg: DBGSPAN = True
    body, n, nst = gen(x.stop, x.stamps, x.map1, x.touch1, x.touch2)
    open(x.out, "w").write(wrap(body))
    print(f"wrote {x.out}: {body.count(chr(10))} lines, {n} nops inserted, {nst} stamps")
```
